```python
import torch

def _softmax(x, axis=-1):
    return torch.softmax(x, dim=axis)

def _gelu(x):
    return torch.nn.functional.gelu(x, approximate='tanh')

def _silu(x):
    return torch.nn.functional.silu(x)

def _sigmoid(x):
    return torch.sigmoid(x)

def _layernorm(x, axis=-1, eps=1e-05):
    m = x.mean(dim=axis, keepdim=True)
    v = x.var(dim=axis, keepdim=True, unbiased=False)
    return (x - m) / torch.sqrt(v + eps)

def _scatter_add(tgt, idx, src, axis=0):
    return tgt.clone().index_add_(axis, idx, src)

def _segment_sum(src, seg, n):
    out = torch.zeros((n,) + src.shape[1:], dtype=src.dtype)
    return out.index_add_(0, seg, src)

def _pad(x, pw):
    flat = tuple((v for pair in reversed(pw) for v in pair))
    return torch.nn.functional.pad(x, flat)
kernel_name = 'adaLN_cond__mha_block__glu_gated_bilinear__prompt'

def setup_inputs():

    _w = lambda a: (lambda t: t.to(torch.bfloat16) if t.is_floating_point() else t)(torch.as_tensor(a))

    def _A_setup():
        B, S, D, H = (1, 2048, 576, 32)
        return {'x': _w((lambda *s: torch.randn(*s, dtype=torch.bfloat16) * 0.05)(B, S, D)), 'wqkv': _w((lambda *s: torch.randn(*s, dtype=torch.bfloat16) * 0.05)(D, 3 * D)), 'wo': _w((lambda *s: torch.randn(*s, dtype=torch.bfloat16) * 0.05)(D, D))}
    _A_in = _A_setup()

    def _B_setup():
        B, S, D, F = (1, 2048, 576, 4608)
        return {'x': _w((lambda *s: torch.randn(*s, dtype=torch.bfloat16) * 0.05)(B, S, D)), 'w_gate': _w((lambda *s: torch.randn(*s, dtype=torch.bfloat16) * 0.8)(D, F) * D ** (-0.5)), 'w_up': _w((lambda *s: torch.randn(*s, dtype=torch.bfloat16) * 0.8)(D, F) * D ** (-0.5)), 'w_down': _w((lambda *s: torch.randn(*s, dtype=torch.bfloat16) * 0.8)(F, D) * F ** (-0.5))}
    _B_in = _B_setup()
    return {'A_x': _A_in['x'], 'A_wqkv': _A_in['wqkv'], 'A_wo': _A_in['wo'], 'B_x': _B_in['x'], 'B_w_gate': _B_in['w_gate'], 'B_w_up': _B_in['w_up'], 'B_w_down': _B_in['w_down'], 'c': _w((lambda *s: torch.randn(*s, dtype=torch.bfloat16) * 0.2)(1, 576) * 8.0), 'w_mod': _w((lambda *s: torch.randn(*s, dtype=torch.bfloat16) * 0.2)(576, 6 * 576) * 576 ** (-0.5) * 8.0)}

def reference(A_x, A_wqkv, A_wo, B_x, B_w_gate, B_w_up, B_w_down, c, w_mod):

    def _A_ref(x, wqkv, wo):
        B, S, D = x.shape
        H = 32
        Dh = D // H
        qkv = (lambda x, *d: x.permute(*d))((x @ wqkv).reshape(B, S, 3, H, Dh), 2, 0, 3, 1, 4)
        q, k, v = (qkv[0], qkv[1], qkv[2])
        scores = torch.einsum('bhqd,bhkd->bhqk', q, k) * Dh ** (-0.5)
        p = _softmax(scores, axis=-1)
        o = torch.einsum('bhqk,bhkd->bhqd', p, v)
        return (lambda x, *d: x.permute(*d))(o, 0, 2, 1, 3).reshape(B, S, D) @ wo

    def _B_ref(x, w_gate, w_up, w_down):
        g = torch.einsum('bsd,df->bsf', x, w_gate)
        u = torch.einsum('bsd,df->bsf', x, w_up)
        h = g * u
        return torch.einsum('bsf,fd->bsd', h, w_down)
    x = A_x
    mod = (_silu(c) @ w_mod).reshape(c.shape[0], 6, 1, -1)
    sa, ca, ga, sb, cb, gb = (mod[:, 0].clone(), mod[:, 1].clone(), mod[:, 2].clone(), mod[:, 3].clone(), mod[:, 4].clone(), mod[:, 5].clone())
    h = _layernorm(x, axis=-1) * (1 + ca) + sa
    x = x + ga * _A_ref(h, A_wqkv, A_wo)
    h = _layernorm(x, axis=-1) * (1 + cb) + sb
    x = x + gb * _B_ref(h, B_w_gate, B_w_up, B_w_down)
    return x
```

```python
import json, sys

NAME = 'adaLN_cond__mha_block__glu_gated_bilinear__prompt'
S, D, H, DH, F = 2048, 576, 32, 18, 4608

KA = dict(x=0, wqkv=8, wo=16, bx=24, wg=32, wu=40, wd=48, c=56, wmod=64, out=72, dbg=80, ws=88)

MB = 1 << 20
WS = dict(MOD=0, H1=1 * MB, QP=4 * MB, KP=8 * MB, VT=12 * MB, O=16 * MB, X1=20 * MB, H2=24 * MB, HH=32 * MB)
WS_BYTES = 256 * MB


class K:
    def __init__(self, name):
        self.name = name
        self.l = []
        self.maxv = 0
        self.maxs = 0

    def __call__(self, s):
        for line in s.strip('\n').split('\n'):
            self.l.append('    ' + line.strip())

    def label(self, s):
        self.l.append(s + ':')

    def text(self, nvgpr, nsgpr=102, accum=None):
        hdr = [f'.globl {self.name}', '.p2align 8', f'.type {self.name},@function', f'{self.name}:']
        return '\n'.join(hdr + self.l) + '\n'


def srd(k, s, ptr_s, nbytes, off=0):
    if off:
        k(f's_add_u32 s{s}, s{ptr_s}, {off}')
        k(f's_addc_u32 s{s+1}, s{ptr_s+1}, 0')
    else:
        k(f's_mov_b32 s{s}, s{ptr_s}')
        k(f's_mov_b32 s{s+1}, s{ptr_s+1}')
    k(f's_mov_b32 s{s+2}, {nbytes}')
    k(f's_mov_b32 s{s+3}, 0x00020000')


def desc(name, nvgpr, nsgpr=102):
    acc = (nvgpr + 3) // 4 * 4
    return f'''.amdhsa_kernel {name}
  .amdhsa_next_free_vgpr {nvgpr}
  .amdhsa_next_free_sgpr {nsgpr}
  .amdhsa_accum_offset {acc}
  .amdhsa_group_segment_fixed_size 0
  .amdhsa_kernarg_size 96
  .amdhsa_user_sgpr_count 2
  .amdhsa_user_sgpr_kernarg_segment_ptr 1
  .amdhsa_system_sgpr_workgroup_id_x 1
.end_amdhsa_kernel
'''


def gen_mod():
    k = K('mod_kernel')
    NWG = 27
    k(f'''
    s_cmp_ge_u32 s2, {NWG}
    s_cbranch_scc1 mod_done
    s_load_dwordx2 s[4:5], s[0:1], {KA['c']}
    s_load_dwordx2 s[6:7], s[0:1], {KA['wmod']}
    s_load_dwordx2 s[8:9], s[0:1], {KA['ws']}
    s_waitcnt lgkmcnt(0)
    ''')
    srd(k, 12, 4, D * 2)
    srd(k, 16, 6, D * 6 * D * 2)
    srd(k, 20, 8, 6 * D * 4, WS['MOD'])
    k('''
    v_lshlrev_b32 v1, 1, v0
    buffer_load_ushort v2, v1, s[12:15], 0 offen
    v_lshlrev_b32 v3, 2, v0
    s_waitcnt vmcnt(0)
    v_lshlrev_b32 v2, 16, v2
    v_mul_f32 v4, 0xbfb8aa3b, v2
    v_exp_f32 v4, v4
    s_nop 0
    v_add_f32 v4, 1.0, v4
    v_rcp_f32 v4, v4
    s_nop 0
    v_mul_f32 v4, v2, v4
    v_cvt_pk_bf16_f32 v4, v4, v4
    v_lshlrev_b32 v4, 16, v4
    v_cmp_gt_u32 vcc, 576, v0
    s_and_saveexec_b64 s[10:11], vcc
    ds_write_b32 v3, v4
    s_mov_b64 exec, s[10:11]
    s_waitcnt lgkmcnt(0)
    s_barrier
    v_lshrrev_b32 v5, 6, v0
    v_and_b32 v6, 63, v0
    s_lshl_b32 s3, s2, 8
    v_mov_b32 v7, 36*6912
    v_mul_lo_u32 v7, v5, v7
    v_lshlrev_b32 v8, 2, v6
    v_add3_u32 v7, v7, v8, s3
    v_mul_u32_u24 v9, 144, v5
    ''')
    for j in range(36):
        k(f'buffer_load_dword v{16+j}, v7, s[16:19], 0 offen')
        k(f'v_add_u32 v7, 6912, v7')
    for j in range(36):
        k(f'ds_read_b32 v{60+j}, v9 offset:{4*j}')
    k('''
    v_mov_b32 v10, 0
    v_mov_b32 v11, 0
    s_waitcnt vmcnt(0) lgkmcnt(0)
    ''')
    for j in range(36):
        k(f'v_lshlrev_b32 v12, 16, v{16+j}')
        k(f'v_and_b32 v13, 0xffff0000, v{16+j}')
        k(f'v_fmac_f32 v10, v12, v{60+j}')
        k(f'v_fmac_f32 v11, v13, v{60+j}')
    k('''
    v_lshlrev_b32 v12, 9, v5
    v_lshl_add_u32 v12, v6, 3, v12
    ds_write_b64 v12, v[10:11] offset:4096
    s_waitcnt lgkmcnt(0)
    s_barrier
    v_cmp_gt_u32 vcc, 128, v0
    s_and_saveexec_b64 s[10:11], vcc
    s_cbranch_execz mod_end
    v_lshlrev_b32 v12, 2, v0
    ''')
    for j in range(16):
        k(f'ds_read_b32 v{16+j}, v12 offset:{4096+512*j}')
    k('s_waitcnt lgkmcnt(0)')
    for j in range(1, 16):
        k(f'v_add_f32 v16, v16, v{16+j}')
    k('''
    v_cvt_pk_bf16_f32 v16, v16, v16
    v_lshlrev_b32 v16, 16, v16
    s_lshl_b32 s3, s2, 7
    v_add_u32 v13, s3, v0
    v_mov_b32 v14, 0
    v_subrev_u32 v15, 576, v13
    v_cmp_gt_u32 vcc, 576, v15
    v_cndmask_b32 v14, v14, 1.0, vcc
    v_subrev_u32 v15, 2304, v13
    v_cmp_gt_u32 vcc, 576, v15
    v_cndmask_b32 v14, v14, 1.0, vcc
    v_add_f32 v16, v16, v14
    v_cvt_pk_bf16_f32 v16, v16, v16
    v_lshlrev_b32 v16, 16, v16
    v_lshlrev_b32 v13, 2, v13
    buffer_store_dword v16, v13, s[20:23], 0 offen
    ''')
    k.label('mod_end')
    k('s_mov_b64 exec, s[10:11]')
    k.label('mod_done')
    k('s_endpgm')
    return k, dict(grid=NWG, block=1024, lds=16384, vgpr=100)


def gen_ln(name, src_is_ws, src_off, dst_off, sc_idx, sh_idx, pads):
    k = K(name)
    NWG = S // 8
    k(f'''
    s_cmp_ge_u32 s2, {NWG}
    s_cbranch_scc1 {name}_done
    s_load_dwordx2 s[4:5], s[0:1], {KA['x']}
    s_load_dwordx2 s[8:9], s[0:1], {KA['ws']}
    s_waitcnt lgkmcnt(0)
    ''')
    if src_is_ws:
        srd(k, 12, 8, S * D * 2, src_off)
    else:
        srd(k, 12, 4, S * D * 2)
    srd(k, 16, 8, S * D * 2, dst_off)
    srd(k, 20, 8, 6 * D * 4, WS['MOD'])
    k('''
    v_and_b32 v1, 31, v0
    v_lshrrev_b32 v2, 5, v0
    s_lshl_b32 s3, s2, 3
    v_add_u32 v2, s3, v2
    v_mul_u32_u24 v3, 1152, v2
    v_lshl_add_u32 v3, v1, 2, v3
    v_lshlrev_b32 v4, 3, v1
    ''')
    k(f'v_add_u32 v89, {sc_idx*2304}, v4')
    k(f'v_add_u32 v90, {sh_idx*2304}, v4')
    for j in range(9):
        k(f'buffer_load_dword v{10+j}, v3, s[12:15], 0 offen offset:{128*j}')
    for j in range(9):
        k(f'buffer_load_dwordx2 v[{40+2*j}:{41+2*j}], v89, s[20:23], 0 offen offset:{256*j}')
        k(f'buffer_load_dwordx2 v[{60+2*j}:{61+2*j}], v90, s[20:23], 0 offen offset:{256*j}')
    if pads:
        srd(k, 24, 8, 3 * 4 * MB, WS['QP'])
        k('''
        v_lshlrev_b32 v5, 11, v1
        v_add_u32 v5, v5, v2
        v_lshlrev_b32 v5, 6, v5
        v_add_u32 v5, 36, v5
        v_mov_b32 v80, 0
        v_mov_b32 v81, 0
        v_mov_b32 v82, 0
        v_mov_b32 v83, 0
        buffer_store_dwordx4 v[80:83], v5, s[24:27], 0 offen
        buffer_store_dwordx3 v[80:82], v5, s[24:27], 0 offen offset:16
        v_add_u32 v6, 0x400000, v5
        v_mov_b32 v84, 0x3f803f80
        v_mov_b32 v85, 0
        v_mov_b32 v86, 0
        v_mov_b32 v87, 0
        buffer_store_dwordx4 v[84:87], v6, s[24:27], 0 offen
        buffer_store_dwordx3 v[80:82], v6, s[24:27], 0 offen offset:16
        v_lshlrev_b32 v7, 5, v1
        v_add_u32 v7, 18, v7
        v_lshlrev_b32 v7, 12, v7
        v_lshl_add_u32 v7, v2, 1, v7
        v_add_u32 v7, 0x800000, v7
        v_mov_b32 v88, 0x3f80
        buffer_store_short v88, v7, s[24:27], 0 offen
        ''')
    k('s_waitcnt vmcnt(%d)' % (18 + (5 if pads else 0)))
    for j in range(9):
        k(f'v_lshlrev_b32 v{20+2*j}, 16, v{10+j}')
        k(f'v_and_b32 v{21+2*j}, 0xffff0000, v{10+j}')
    k('v_add_f32 v8, v20, v21')
    for j in range(2, 18):
        k(f'v_add_f32 v8, v8, v{20+j}')

    def reduce32(reg):
        for m in (1, 2, 4, 8, 16):
            k(f'ds_swizzle_b32 v9, v{reg} offset:{(m << 10) | 0x1f}')
            k('s_waitcnt lgkmcnt(0)')
            k(f'v_add_f32 v{reg}, v{reg}, v9')
    reduce32(8)
    k('v_mul_f32 v8, 0x3ae38e39, v8')
    for j in range(18):
        k(f'v_sub_f32 v{20+j}, v{20+j}, v8')
    k('v_mul_f32 v8, v20, v20')
    for j in range(1, 18):
        k(f'v_fmac_f32 v8, v{20+j}, v{20+j}')
    reduce32(8)
    k('''
    v_mov_b32 v9, 0x3727c5ac
    v_fmac_f32 v9, 0x3ae38e39, v8
    v_rsq_f32 v9, v9
    s_waitcnt vmcnt(0)
    ''')
    for j in range(18):
        k(f'v_mul_f32 v{20+j}, v{20+j}, v9')
        k(f'v_fma_f32 v{20+j}, v{20+j}, v{40+j}, v{60+j}')
    for j in range(9):
        k(f'v_cvt_pk_bf16_f32 v{10+j}, v{20+2*j}, v{21+2*j}')
        k(f'buffer_store_dword v{10+j}, v3, s[16:19], 0 offen offset:{128*j}')
    k.label(f'{name}_done')
    k('s_endpgm')
    return k, dict(grid=NWG, block=256, lds=0, vgpr=96)


def gen_gemm(name, a_src, a_off, lda, Kdim, w_args, ldb, N, BM, BN, epi):
    k = K(name)
    NB = len(w_args)
    TM, TN = BM // 64, BN // 64
    nmt, nnt = S // BM, N // BN
    NWG = nmt * nnt
    NST = Kdim // 32
    ALD = 80
    BLD = BN * 2 + 64
    ABUF = BM * ALD
    BBUF = 32 * BLD
    STAGE = ABUF + NB * BBUF
    LDS = 2 * STAGE
    NA = BM * 4 // 256
    NBC = BN * 4 // 256
    cpr = BN // 8

    k(f'''
    s_cmp_ge_u32 s2, {NWG}
    s_cbranch_scc1 {name}_done
    s_load_dwordx2 s[8:9], s[0:1], {KA['ws']}
    ''')
    if a_src != 'ws':
        k(f's_load_dwordx2 s[4:5], s[0:1], {KA[a_src]}')
    for i, w in enumerate(w_args):
        k(f's_load_dwordx2 s[{36+2*i}:{37+2*i}], s[0:1], {KA[w]}')
    if epi in ('wo',):
        k(f's_load_dwordx2 s[6:7], s[0:1], {KA["x"]}')
    if epi in ('down',):
        k(f's_load_dwordx2 s[6:7], s[0:1], {KA["out"]}')
    k('s_waitcnt lgkmcnt(0)')
    if a_src == 'ws':
        srd(k, 12, 8, S * lda, a_off)
    else:
        srd(k, 12, 4, S * lda)
    for i in range(NB):
        srd(k, 16 + 4 * i, 36 + 2 * i, Kdim * ldb)
    k(f'''
    s_mov_b32 s30, {(1 << 32) // nnt + 1}
    s_mul_hi_u32 s31, s2, s30
    s_mul_i32 s32, s31, {nnt}
    s_sub_u32 s32, s2, s32
    s_mul_i32 s33, s31, {BM}
    s_mul_i32 s34, s32, {BN}
    ''')
    vA = 2
    vB = vA + NA
    vLA = vB + NBC
    vLB = vLA + NA
    vRA = vLB + NBC
    vRB = vRA + 1
    vSTG = 16
    nstg = 4 * (NA + NB * NBC)
    vFA = vSTG + nstg
    vFB = vFA + 4 * TM
    vACC = vFB + 4 * TN * NB
    vACC = (vACC + 3) // 4 * 4
    nacc = 16 * TM * TN * NB
    vT = vACC + nacc
    nv = vT + 24
    assert nv <= 256, nv

    k('v_and_b32 v1, 63, v0')
    k('v_lshrrev_b32 v15, 6, v0')
    for i in range(NA):
        k(f'v_add_u32 v{vT}, {256*i}, v0')
        k(f'v_lshrrev_b32 v{vT+1}, 2, v{vT}')
        k(f'v_and_b32 v{vT+2}, 3, v{vT}')
        k(f'v_add_u32 v{vT+3}, s33, v{vT+1}')
        k(f'v_mov_b32 v{vT+4}, {lda}')
        k(f'v_mul_lo_u32 v{vA+i}, v{vT+3}, v{vT+4}')
        k(f'v_lshl_add_u32 v{vA+i}, v{vT+2}, 4, v{vA+i}')
        k(f'v_mul_u32_u24 v{vLA+i}, {ALD}, v{vT+1}')
        k(f'v_lshl_add_u32 v{vLA+i}, v{vT+2}, 4, v{vLA+i}')
    for i in range(NBC):
        k(f'v_add_u32 v{vT}, {256*i}, v0')
        if cpr & (cpr - 1) == 0:
            sh = cpr.bit_length() - 1
            k(f'v_lshrrev_b32 v{vT+1}, {sh}, v{vT}')
            k(f'v_and_b32 v{vT+2}, {cpr-1}, v{vT}')
        else:
            k(f'v_mov_b32 v{vT+4}, {(1<<20)//cpr + 1}')
            k(f'v_mul_u32_u24 v{vT+1}, v{vT}, v{vT+4}')
            k(f'v_lshrrev_b32 v{vT+1}, 20, v{vT+1}')
            k(f'v_mul_u32_u24 v{vT+2}, {cpr}, v{vT+1}')
            k(f'v_sub_u32 v{vT+2}, v{vT}, v{vT+2}')
        k(f'v_mov_b32 v{vT+4}, {ldb}')
        k(f'v_mul_lo_u32 v{vB+i}, v{vT+1}, v{vT+4}')
        k(f'v_lshl_add_u32 v{vB+i}, v{vT+2}, 4, v{vB+i}')
        k(f's_lshl_b32 s35, s34, 1')
        k(f'v_add_u32 v{vB+i}, s35, v{vB+i}')
        k(f'v_mul_u32_u24 v{vLB+i}, {BLD}, v{vT+1}')
        k(f'v_lshl_add_u32 v{vLB+i}, v{vT+2}, 4, v{vLB+i}')
        k(f'v_add_u32 v{vLB+i}, {ABUF}, v{vLB+i}')
    k(f'''
    v_lshrrev_b32 v{vT}, 1, v15
    v_and_b32 v{vT+1}, 1, v15
    v_and_b32 v{vT+2}, 31, v1
    v_lshrrev_b32 v{vT+3}, 5, v1
    v_mul_u32_u24 v{vT+4}, {BM//2}, v{vT}
    v_add_u32 v{vT+4}, v{vT+4}, v{vT+2}
    v_mul_u32_u24 v{vRA}, {ALD}, v{vT+4}
    v_lshl_add_u32 v{vRA}, v{vT+3}, 4, v{vRA}
    ''')
    k(f'''
    v_and_b32 v{vT+5}, 15, v1
    v_lshrrev_b32 v{vT+6}, 2, v{vT+5}
    v_lshl_add_u32 v{vT+6}, v{vT+3}, 3, v{vT+6}
    v_mul_u32_u24 v{vRB}, {BLD}, v{vT+6}
    v_and_b32 v{vT+7}, 3, v{vT+5}
    v_lshl_add_u32 v{vRB}, v{vT+7}, 3, v{vRB}
    v_lshrrev_b32 v{vT+7}, 4, v1
    v_and_b32 v{vT+7}, 1, v{vT+7}
    v_lshl_add_u32 v{vRB}, v{vT+7}, 5, v{vRB}
    v_mul_u32_u24 v{vT+7}, {BN}, v{vT+1}
    v_add_u32 v{vRB}, v{vRB}, v{vT+7}
    v_add_u32 v{vRB}, {ABUF}, v{vRB}
    ''')
    for i in range(nacc):
        k(f'v_mov_b32 v{vACC+i}, 0')

    def gload(soffA, soffB):
        for i in range(NA):
            k(f'buffer_load_dwordx4 v[{vSTG+4*i}:{vSTG+4*i+3}], v{vA+i}, s[12:15], {soffA} offen')
        for b in range(NB):
            for i in range(NBC):
                r = vSTG + 4 * (NA + b * NBC + i)
                k(f'buffer_load_dwordx4 v[{r}:{r+3}], v{vB+i}, s[{16+4*b}:{19+4*b}], {soffB} offen')

    def lwrite(buf):
        for i in range(NA):
            k(f'ds_write_b128 v{vLA+i}, v[{vSTG+4*i}:{vSTG+4*i+3}] offset:{buf*STAGE}')
        for b in range(NB):
            for i in range(NBC):
                r = vSTG + 4 * (NA + b * NBC + i)
                k(f'ds_write_b128 v{vLB+i}, v[{r}:{r+3}] offset:{buf*STAGE+b*BBUF}')

    def compute(buf):
        for ks in range(2):
            for i in range(TM):
                k(f'ds_read_b128 v[{vFA+4*i}:{vFA+4*i+3}], v{vRA} offset:{buf*STAGE+i*32*ALD+ks*32}')
            for b in range(NB):
                for j in range(TN):
                    r = vFB + 4 * (b * TN + j)
                    o = buf * STAGE + b * BBUF + ks * 16 * BLD + j * 64
                    k(f'ds_read_b64_tr_b16 v[{r}:{r+1}], v{vRB} offset:{o}')
                    k(f'ds_read_b64_tr_b16 v[{r+2}:{r+3}], v{vRB} offset:{o+4*BLD}')
            k('s_waitcnt lgkmcnt(0)')
            for b in range(NB):
                for i in range(TM):
                    for j in range(TN):
                        a = vACC + 16 * ((b * TM + i) * TN + j)
                        r = vFB + 4 * (b * TN + j)
                        k(f'v_mfma_f32_32x32x16_bf16 v[{a}:{a+15}], v[{r}:{r+3}], v[{vFA+4*i}:{vFA+4*i+3}], v[{a}:{a+15}]')

    k('s_mov_b32 s40, 0')
    k('s_mov_b32 s41, 0')
    gload('s40', 's41')
    k('s_waitcnt vmcnt(0)')
    lwrite(0)
    k('s_waitcnt lgkmcnt(0)')
    k('s_barrier')
    k(f's_mov_b32 s42, {NST//2}')
    assert NST % 2 == 0
    k.label(f'{name}_loop')
    for half in range(2):
        k('s_add_u32 s40, s40, 64')
        k(f's_add_u32 s41, s41, {32*ldb}')
        gload('s40', 's41')
        compute(half)
        k('s_waitcnt vmcnt(0)')
        lwrite(1 - half)
        k('s_waitcnt lgkmcnt(0)')
        k('s_barrier')
    k('s_sub_u32 s42, s42, 1')
    k('s_cmp_lg_u32 s42, 0')
    k(f's_cbranch_scc1 {name}_loop')
    k('s_nop 15')

    t = vT
    k(f'''
    v_lshrrev_b32 v{t}, 1, v15
    v_and_b32 v{t+1}, 1, v15
    v_and_b32 v{t+2}, 31, v1
    v_lshrrev_b32 v{t+3}, 5, v1
    v_mul_u32_u24 v{t+4}, {BM//2}, v{t}
    v_add3_u32 v{t+4}, v{t+4}, v{t+2}, s33
    v_mul_u32_u24 v{t+5}, {BN//2}, v{t+1}
    v_lshl_add_u32 v{t+5}, v{t+3}, 2, v{t+5}
    v_add_u32 v{t+5}, s34, v{t+5}
    ''')
    if epi in ('wo', 'down'):
        gidx = 2 if epi == 'wo' else 5
        srd(k, 20, 8, 6 * D * 4, WS['MOD'])
        if epi == 'wo':
            srd(k, 24, 6, S * D * 2)
            srd(k, 28, 8, S * D * 2, WS['X1'])
        else:
            srd(k, 24, 8, S * D * 2, WS['X1'])
            srd(k, 28, 6, S * D * 2)
        for i in range(TM):
            for j in range(TN):
                a = vACC + 16 * (i * TN + j)
                for q in range(4):
                    k(f'v_add_u32 v{t+6}, {j*32+8*q}, v{t+5}')
                    k(f'v_add_u32 v{t+7}, {32*i}, v{t+4}')
                    k(f'v_mul_u32_u24 v{t+8}, 1152, v{t+7}')
                    k(f'v_lshl_add_u32 v{t+8}, v{t+6}, 1, v{t+8}')
                    k(f'v_lshlrev_b32 v{t+9}, 2, v{t+6}')
                    k(f'v_add_u32 v{t+9}, {gidx*2304}, v{t+9}')
                    k(f'buffer_load_dwordx4 v[{t+12}:{t+15}], v{t+9}, s[20:23], 0 offen')
                    k(f'buffer_load_dwordx2 v[{t+10}:{t+11}], v{t+8}, s[24:27], 0 offen')
                    k('s_waitcnt vmcnt(0)')
                    k(f'v_lshlrev_b32 v{t+16}, 16, v{t+10}')
                    k(f'v_and_b32 v{t+17}, 0xffff0000, v{t+10}')
                    k(f'v_lshlrev_b32 v{t+18}, 16, v{t+11}')
                    k(f'v_and_b32 v{t+19}, 0xffff0000, v{t+11}')
                    for e in range(4):
                        k(f'v_fmac_f32 v{t+16+e}, v{a+4*q+e}, v{t+12+e}')
                    k(f'v_cvt_pk_bf16_f32 v{t+10}, v{t+16}, v{t+17}')
                    k(f'v_cvt_pk_bf16_f32 v{t+11}, v{t+18}, v{t+19}')
                    k(f'buffer_store_dwordx2 v[{t+10}:{t+11}], v{t+8}, s[28:31], 0 offen')
    elif epi == 'gu':
        srd(k, 28, 8, S * F * 2, WS['HH'])
        for i in range(TM):
            for j in range(TN):
                a = vACC + 16 * (i * TN + j)
                b = vACC + 16 * ((TM + i) * TN + j)
                for q in range(4):
                    k(f'v_add_u32 v{t+6}, {j*32+8*q}, v{t+5}')
                    k(f'v_add_u32 v{t+7}, {32*i}, v{t+4}')
                    k(f'v_mul_u32_u24 v{t+8}, {F*2}, v{t+7}')
                    k(f'v_lshl_add_u32 v{t+8}, v{t+6}, 1, v{t+8}')
                    for e in range(4):
                        k(f'v_mul_f32 v{t+16+e}, v{a+4*q+e}, v{b+4*q+e}')
                    k(f'v_cvt_pk_bf16_f32 v{t+10}, v{t+16}, v{t+17}')
                    k(f'v_cvt_pk_bf16_f32 v{t+11}, v{t+18}, v{t+19}')
                    k(f'buffer_store_dwordx2 v[{t+10}:{t+11}], v{t+8}, s[28:31], 0 offen')
    elif epi == 'qkv':
        srd(k, 28, 8, 3 * 4 * MB, WS['QP'])
        k('s_mov_b32 s43, 3641')
        k('s_mov_b32 s44, 0x3ead8bd9')
        for i in range(TM):
            k(f'v_add_u32 v{t+7}, {32*i}, v{t+4}')
            k(f'v_lshlrev_b32 v{t+20}, 6, v{t+7}')
            k(f'v_and_b32 v{t+21}, 4, v{t+7}')
            k(f'v_and_b32 v{t+22}, 8, v{t+7}')
            k(f'v_and_b32 v{t+23}, 0xfffffff3, v{t+7}')
            k(f'v_lshl_add_u32 v{t+23}, v{t+21}, 1, v{t+23}')
            k(f'v_lshrrev_b32 v{t+22}, 1, v{t+22}')
            k(f'v_add_u32 v{t+23}, v{t+23}, v{t+22}')
            k(f'v_lshlrev_b32 v{t+23}, 1, v{t+23}')
            for j in range(TN):
                a = vACC + 16 * (i * TN + j)
                for q in range(4):
                    for e in range(4):
                        k(f'v_add_u32 v{t+6}, {j*32+8*q+e}, v{t+5}')
                        k(f'v_mul_u32_u24 v{t+8}, s43, v{t+6}')
                        k(f'v_lshrrev_b32 v{t+8}, 16, v{t+8}')
                        k(f'v_mul_u32_u24 v{t+9}, 18, v{t+8}')
                        k(f'v_sub_u32 v{t+9}, v{t+6}, v{t+9}')
                        k(f'v_lshlrev_b32 v{t+10}, 17, v{t+8}')
                        k(f'v_lshl_add_u32 v{t+10}, v{t+9}, 1, v{t+10}')
                        k(f'v_add_u32 v{t+10}, v{t+10}, v{t+20}')
                        k(f'v_lshlrev_b32 v{t+11}, 17, v{t+8}')
                        k(f'v_lshl_add_u32 v{t+11}, v{t+9}, 12, v{t+11}')
                        k(f'v_add_u32 v{t+11}, v{t+11}, v{t+23}')
                        k(f'v_cmp_gt_u32 vcc, 64, v{t+8}')
                        k(f'v_cndmask_b32 v{t+10}, v{t+11}, v{t+10}, vcc')
                        k(f'v_mul_f32 v{t+12}, s44, v{a+4*q+e}')
                        k(f'v_cmp_gt_u32 vcc, 32, v{t+8}')
                        k(f'v_cndmask_b32 v{t+12}, v{a+4*q+e}, v{t+12}, vcc')
                        k(f'v_cvt_pk_bf16_f32 v{t+12}, v{t+12}, v{t+12}')
                        k(f'buffer_store_short v{t+12}, v{t+10}, s[28:31], 0 offen')
    k.label(f'{name}_done')
    k('s_endpgm')
    return k, dict(grid=NWG, block=256, lds=LDS, vgpr=nv)


def gen_attn():
    name = 'attn_kernel'
    k = K(name)
    NWG = 256
    KT = 128
    KLD = 80
    VLD = KT * 2 + 16
    KBUF = KT * KLD
    VBUF = 32 * VLD
    STAGE = KBUF + VBUF
    LDS = 2 * STAGE
    NST = S // KT
    k(f'''
    s_cmp_ge_u32 s2, {NWG}
    s_cbranch_scc1 {name}_done
    s_load_dwordx2 s[8:9], s[0:1], {KA['ws']}
    s_waitcnt lgkmcnt(0)
    ''')
    srd(k, 12, 8, 4 * MB, WS['QP'])
    srd(k, 16, 8, 4 * MB, WS['KP'])
    srd(k, 20, 8, 4 * MB, WS['VT'])
    srd(k, 24, 8, S * D * 2, WS['O'])
    k('''
    s_lshr_b32 s30, s2, 3
    s_and_b32 s31, s2, 7
    s_lshl_b32 s32, s30, 17
    s_lshl_b32 s33, s31, 14
    s_add_u32 s33, s33, s32
    v_and_b32 v1, 63, v0
    v_lshrrev_b32 v2, 6, v0
    v_and_b32 v3, 31, v1
    v_lshrrev_b32 v4, 5, v1
    ''')
    k('''
    v_lshl_add_u32 v5, v2, 5, v3
    v_lshlrev_b32 v5, 6, v5
    v_lshl_add_u32 v5, v4, 4, v5
    v_add_u32 v5, s33, v5
    buffer_load_dwordx4 v[16:19], v5, s[12:15], 0 offen
    buffer_load_dwordx4 v[20:23], v5, s[12:15], 0 offen offset:32
    ''')
    k(f'''
    v_lshlrev_b32 v6, 4, v0
    v_add_u32 v6, s32, v6
    v_lshrrev_b32 v7, 2, v0
    v_mul_u32_u24 v7, {KLD}, v7
    v_and_b32 v8, 3, v0
    v_lshl_add_u32 v7, v8, 4, v7
    v_lshrrev_b32 v9, 4, v0
    v_and_b32 v10, 15, v0
    v_lshlrev_b32 v11, 12, v9
    v_lshl_add_u32 v11, v10, 4, v11
    v_add_u32 v11, s32, v11
    v_mul_u32_u24 v12, {VLD}, v9
    v_lshl_add_u32 v12, v10, 4, v12
    v_add_u32 v12, {KBUF}, v12
    ''')
    k(f'''
    v_mul_u32_u24 v13, {KLD}, v3
    v_lshl_add_u32 v13, v4, 4, v13
    v_mul_u32_u24 v14, {VLD}, v3
    v_lshl_add_u32 v14, v4, 4, v14
    v_add_u32 v14, {KBUF}, v14
    v_mov_b32 v15, 0xff800000
    ''')
    vQ = 16
    vKS = 24
    vVS = 28
    vKF = 32
    vVF = 40
    vS = 48
    vP = 64
    vO = 72
    nv = 96

    def kload(soff):
        k(f'buffer_load_dwordx4 v[{vKS}:{vKS+3}], v6, s[16:19], {soff} offen')

    def vload(soff):
        k(f'buffer_load_dwordx4 v[{vVS}:{vVS+3}], v11, s[20:23], {soff} offen')

    def kwrite(buf):
        k(f'ds_write_b128 v7, v[{vKS}:{vKS+3}] offset:{buf*STAGE}')

    def vwrite(buf):
        k(f'ds_write_b128 v12, v[{vVS}:{vVS+3}] offset:{buf*STAGE}')

    k('s_mov_b32 s40, 0')
    kload('s40')
    k('s_waitcnt vmcnt(0)')
    kwrite(0)
    k('s_waitcnt lgkmcnt(0)')
    k('s_barrier')
    k(f's_mov_b32 s42, {NST//2}')
    k.label('attn_p1')
    for half in range(2):
        k(f's_add_u32 s40, s40, {KT*64}')
        kload('s40')
        for kt in range(KT // 32):
            o = half * STAGE + kt * 32 * KLD
            k(f'ds_read_b128 v[{vKF}:{vKF+3}], v13 offset:{o}')
            k(f'ds_read_b128 v[{vKF+4}:{vKF+7}], v13 offset:{o+32}')
            k('s_waitcnt lgkmcnt(0)')
            k(f'v_mfma_f32_32x32x16_bf16 v[{vS}:{vS+15}], v[{vKF}:{vKF+3}], v[{vQ}:{vQ+3}], 0')
            k(f'v_mfma_f32_32x32x16_bf16 v[{vS}:{vS+15}], v[{vKF+4}:{vKF+7}], v[{vQ+4}:{vQ+7}], v[{vS}:{vS+15}]')
            k('s_nop 15')
            for r in range(0, 16, 2):
                k(f'v_max3_f32 v15, v15, v{vS+r}, v{vS+r+1}')
        k('s_waitcnt vmcnt(0)')
        kwrite(1 - half)
        k('s_waitcnt lgkmcnt(0)')
        k('s_barrier')
    k('s_sub_u32 s42, s42, 1')
    k('s_cmp_lg_u32 s42, 0')
    k('s_cbranch_scc1 attn_p1')
    k('''
    v_mov_b32 v48, v15
    s_nop 1
    v_permlane32_swap_b32 v48, v15
    v_max_f32 v15, v15, v48
    ''')
    k(f'''
    v_cvt_pk_bf16_f32 v49, v15, v15
    v_lshlrev_b32 v50, 16, v49
    v_sub_f32 v50, v15, v50
    v_cvt_pk_bf16_f32 v50, v50, v50
    v_and_b32 v49, 0xffff, v49
    v_lshl_or_b32 v49, v50, 16, v49
    v_xor_b32 v49, 0x80008000, v49
    v_cmp_gt_u32 vcc, 32, v1
    v_cndmask_b32 v{vQ+5}, v{vQ+5}, v49, vcc
    ''')
    for r in range(16):
        k(f'v_mov_b32 v{vO+r}, 0')
    k('s_mov_b32 s40, 0')
    k('s_mov_b32 s41, 0')
    kload('s40')
    vload('s41')
    k('s_waitcnt vmcnt(0)')
    kwrite(0)
    vwrite(0)
    k('s_waitcnt lgkmcnt(0)')
    k('s_barrier')
    k(f's_mov_b32 s42, {NST//2}')
    k.label('attn_p2')
    for half in range(2):
        k(f's_add_u32 s40, s40, {KT*64}')
        k(f's_add_u32 s41, s41, {KT*2}')
        kload('s40')
        vload('s41')
        for kt in range(KT // 32):
            o = half * STAGE + kt * 32 * KLD
            ov = half * STAGE + kt * 64
            k(f'ds_read_b128 v[{vKF}:{vKF+3}], v13 offset:{o}')
            k(f'ds_read_b128 v[{vKF+4}:{vKF+7}], v13 offset:{o+32}')
            k(f'ds_read_b128 v[{vVF}:{vVF+3}], v14 offset:{ov}')
            k(f'ds_read_b128 v[{vVF+4}:{vVF+7}], v14 offset:{ov+32}')
            k('s_waitcnt lgkmcnt(2)')
            k(f'v_mfma_f32_32x32x16_bf16 v[{vS}:{vS+15}], v[{vKF}:{vKF+3}], v[{vQ}:{vQ+3}], 0')
            k(f'v_mfma_f32_32x32x16_bf16 v[{vS}:{vS+15}], v[{vKF+4}:{vKF+7}], v[{vQ+4}:{vQ+7}], v[{vS}:{vS+15}]')
            k('s_nop 15')
            for r in range(16):
                k(f'v_exp_f32 v{vS+r}, v{vS+r}')
            for r in range(8):
                k(f'v_cvt_pk_bf16_f32 v{vP+r}, v{vS+2*r}, v{vS+2*r+1}')
            k('s_waitcnt lgkmcnt(0)')
            k('s_nop 1')
            k(f'v_mfma_f32_32x32x16_bf16 v[{vO}:{vO+15}], v[{vVF}:{vVF+3}], v[{vP}:{vP+3}], v[{vO}:{vO+15}]')
            k(f'v_mfma_f32_32x32x16_bf16 v[{vO}:{vO+15}], v[{vVF+4}:{vVF+7}], v[{vP+4}:{vP+7}], v[{vO}:{vO+15}]')
        k('s_waitcnt vmcnt(0)')
        kwrite(1 - half)
        vwrite(1 - half)
        k('s_waitcnt lgkmcnt(0)')
        k('s_barrier')
    k('s_sub_u32 s42, s42, 1')
    k('s_cmp_lg_u32 s42, 0')
    k('s_cbranch_scc1 attn_p2')
    k('s_nop 15')
    k(f'''
    v_mov_b32 v48, v{vO+10}
    v_mov_b32 v49, v{vO+10}
    s_nop 1
    v_permlane32_swap_b32 v48, v49
    v_rcp_f32 v48, v48
    ''')
    k(f'''
    s_mul_i32 s34, s30, 36
    s_lshl_b32 s35, s31, 8
    v_lshl_add_u32 v50, v2, 5, v3
    v_add_u32 v50, s35, v50
    v_mul_u32_u24 v50, 1152, v50
    v_lshl_add_u32 v50, v4, 3, v50
    v_add_u32 v50, s34, v50
    ''')
    for r in range(12):
        k(f'v_mul_f32 v{vO+r}, v{vO+r}, v48')
    for i in range(3):
        k(f'v_cvt_pk_bf16_f32 v{vP+2*i}, v{vO+4*i}, v{vO+4*i+1}')
        k(f'v_cvt_pk_bf16_f32 v{vP+2*i+1}, v{vO+4*i+2}, v{vO+4*i+3}')
    k(f'buffer_store_dword v{vP}, v50, s[24:27], 0 offen')
    k(f'buffer_store_dword v{vP+1}, v50, s[24:27], 0 offen offset:4')
    k(f'buffer_store_dword v{vP+2}, v50, s[24:27], 0 offen offset:16')
    k(f'buffer_store_dword v{vP+3}, v50, s[24:27], 0 offen offset:20')
    k('v_cmp_gt_u32 vcc, 32, v1')
    k('s_and_saveexec_b64 s[36:37], vcc')
    k(f'buffer_store_dword v{vP+4}, v50, s[24:27], 0 offen offset:32')
    k('s_mov_b64 exec, s[36:37]')
    k.label(f'{name}_done')
    k('s_endpgm')
    return k, dict(grid=NWG, block=512, lds=LDS, vgpr=nv)


def main():
    kernels = []
    kernels.append(gen_mod())
    kernels.append(gen_ln('ln1_kernel', False, 0, WS['H1'], 1, 0, True))
    kernels.append(gen_gemm('qkv_kernel', 'ws', WS['H1'], 1152, 576, ['wqkv'], 3456, 1728, 128, 192, 'qkv'))
    kernels.append(gen_attn())
    kernels.append(gen_gemm('wo_kernel', 'ws', WS['O'], 1152, 576, ['wo'], 1152, 576, 64, 64, 'wo'))
    kernels.append(gen_ln('ln2_kernel', True, WS['X1'], WS['H2'], 4, 3, False))
    kernels.append(gen_gemm('gu_kernel', 'ws', WS['H2'], 1152, 576, ['wg', 'wu'], 9216, 4608, 128, 128, 'gu'))
    kernels.append(gen_gemm('down_kernel', 'ws', WS['HH'], 9216, 4608, ['wd'], 1152, 576, 64, 64, 'down'))

    out = []
    hdr = open(f'cdna_kernels/{NAME}.s.ref').read().split('; Override launch')[0]
    out.append(hdr.rstrip('\n'))
    for k, m in kernels:
        out.append(f"; @launch kernel={k.name} grid=({m['grid']},1,1) block=({m['block']},1,1) lds={m['lds']}")
    out.append('.amdgcn_target "amdgcn-amd-amdhsa--gfx950"')
    out.append('.text')
    for k, m in kernels:
        out.append(k.text(m['vgpr']))
    out.append('.section .rodata,"a"')
    for k, m in kernels:
        out.append('.p2align 6')
        out.append(desc(k.name, m['vgpr']))
    open(f'cdna_kernels/{NAME}.s', 'w').write('\n'.join(out))
    json.dump(WS, open('wslayout.json', 'w'))


if __name__ == '__main__':
    main()
```

```python
import json, sys

NAME = 'adaLN_cond__mha_block__glu_gated_bilinear__prompt'
S, D, H, DH, F = 2048, 576, 32, 18, 4608

KA = dict(x=0, wqkv=8, wo=16, bx=24, wg=32, wu=40, wd=48, c=56, wmod=64, out=72, dbg=80, ws=88)

MB = 1 << 20
WS = dict(MOD=0, H1=1 * MB, QP=4 * MB, KP=8 * MB, VT=12 * MB, O=16 * MB, X1=20 * MB, H2=24 * MB, HH=32 * MB, PART=64 * MB)
WS_BYTES = 256 * MB


class K:
    def __init__(self, name):
        self.name = name
        self.l = []
        self.maxv = 0
        self.maxs = 0

    def __call__(self, s):
        for line in s.strip('\n').split('\n'):
            self.l.append('    ' + line.strip())

    def label(self, s):
        self.l.append(s + ':')

    def text(self, nvgpr, nsgpr=102, accum=None):
        hdr = [f'.globl {self.name}', '.p2align 8', f'.type {self.name},@function', f'{self.name}:']
        return '\n'.join(hdr + self.l) + '\n'


def srd(k, s, ptr_s, nbytes, off=0):
    if off:
        k(f's_add_u32 s{s}, s{ptr_s}, {off}')
        k(f's_addc_u32 s{s+1}, s{ptr_s+1}, 0')
    else:
        k(f's_mov_b32 s{s}, s{ptr_s}')
        k(f's_mov_b32 s{s+1}, s{ptr_s+1}')
    k(f's_mov_b32 s{s+2}, {nbytes}')
    k(f's_mov_b32 s{s+3}, 0x00020000')


def desc(name, nvgpr, nsgpr=102):
    acc = (nvgpr + 3) // 4 * 4
    return f'''.amdhsa_kernel {name}
  .amdhsa_next_free_vgpr {nvgpr}
  .amdhsa_next_free_sgpr {nsgpr}
  .amdhsa_accum_offset {acc}
  .amdhsa_group_segment_fixed_size 0
  .amdhsa_kernarg_size 96
  .amdhsa_user_sgpr_count 2
  .amdhsa_user_sgpr_kernarg_segment_ptr 1
  .amdhsa_system_sgpr_workgroup_id_x 1
.end_amdhsa_kernel
'''


def gen_mod():
    k = K('mod_kernel')
    NWG = 27
    k(f'''
    s_cmp_ge_u32 s2, {NWG}
    s_cbranch_scc1 mod_done
    s_load_dwordx2 s[4:5], s[0:1], {KA['c']}
    s_load_dwordx2 s[6:7], s[0:1], {KA['wmod']}
    s_load_dwordx2 s[8:9], s[0:1], {KA['ws']}
    s_waitcnt lgkmcnt(0)
    ''')
    srd(k, 12, 4, D * 2)
    srd(k, 16, 6, D * 6 * D * 2)
    srd(k, 20, 8, 6 * D * 4, WS['MOD'])
    k('''
    v_lshlrev_b32 v1, 1, v0
    buffer_load_ushort v2, v1, s[12:15], 0 offen
    v_lshlrev_b32 v3, 2, v0
    s_waitcnt vmcnt(0)
    v_lshlrev_b32 v2, 16, v2
    v_mul_f32 v4, 0xbfb8aa3b, v2
    v_exp_f32 v4, v4
    s_nop 0
    v_add_f32 v4, 1.0, v4
    v_rcp_f32 v4, v4
    s_nop 0
    v_mul_f32 v4, v2, v4
    v_cvt_pk_bf16_f32 v4, v4, v4
    v_lshlrev_b32 v4, 16, v4
    v_cmp_gt_u32 vcc, 576, v0
    s_and_saveexec_b64 s[10:11], vcc
    ds_write_b32 v3, v4
    s_mov_b64 exec, s[10:11]
    s_waitcnt lgkmcnt(0)
    s_barrier
    v_lshrrev_b32 v5, 6, v0
    v_and_b32 v6, 63, v0
    s_lshl_b32 s3, s2, 8
    v_mov_b32 v7, 36*6912
    v_mul_lo_u32 v7, v5, v7
    v_lshlrev_b32 v8, 2, v6
    v_add3_u32 v7, v7, v8, s3
    v_mul_u32_u24 v9, 144, v5
    ''')
    for j in range(36):
        k(f'buffer_load_dword v{16+j}, v7, s[16:19], 0 offen')
        k(f'v_add_u32 v7, 6912, v7')
    for j in range(36):
        k(f'ds_read_b32 v{60+j}, v9 offset:{4*j}')
    k('''
    v_mov_b32 v10, 0
    v_mov_b32 v11, 0
    s_waitcnt vmcnt(0) lgkmcnt(0)
    ''')
    for j in range(36):
        k(f'v_lshlrev_b32 v12, 16, v{16+j}')
        k(f'v_and_b32 v13, 0xffff0000, v{16+j}')
        k(f'v_fmac_f32 v10, v12, v{60+j}')
        k(f'v_fmac_f32 v11, v13, v{60+j}')
    k('''
    v_lshlrev_b32 v12, 9, v5
    v_lshl_add_u32 v12, v6, 3, v12
    ds_write_b64 v12, v[10:11] offset:4096
    s_waitcnt lgkmcnt(0)
    s_barrier
    v_cmp_gt_u32 vcc, 128, v0
    s_and_saveexec_b64 s[10:11], vcc
    s_cbranch_execz mod_end
    v_lshlrev_b32 v12, 2, v0
    ''')
    for j in range(16):
        k(f'ds_read_b32 v{16+j}, v12 offset:{4096+512*j}')
    k('s_waitcnt lgkmcnt(0)')
    for j in range(1, 16):
        k(f'v_add_f32 v16, v16, v{16+j}')
    k('''
    v_cvt_pk_bf16_f32 v16, v16, v16
    v_lshlrev_b32 v16, 16, v16
    s_lshl_b32 s3, s2, 7
    v_add_u32 v13, s3, v0
    v_mov_b32 v14, 0
    v_subrev_u32 v15, 576, v13
    v_cmp_gt_u32 vcc, 576, v15
    v_cndmask_b32 v14, v14, 1.0, vcc
    v_subrev_u32 v15, 2304, v13
    v_cmp_gt_u32 vcc, 576, v15
    v_cndmask_b32 v14, v14, 1.0, vcc
    v_add_f32 v16, v16, v14
    v_cvt_pk_bf16_f32 v16, v16, v16
    v_lshlrev_b32 v16, 16, v16
    v_lshlrev_b32 v13, 2, v13
    buffer_store_dword v16, v13, s[20:23], 0 offen
    ''')
    k.label('mod_end')
    k('s_mov_b64 exec, s[10:11]')
    k.label('mod_done')
    k('s_endpgm')
    return k, dict(grid=NWG, block=1024, lds=16384, vgpr=100)


def gen_ln(name, src_is_ws, src_off, dst_off, sc_idx, sh_idx, pads):
    k = K(name)
    NWG = S // 8
    k(f'''
    s_cmp_ge_u32 s2, {NWG}
    s_cbranch_scc1 {name}_done
    s_load_dwordx2 s[4:5], s[0:1], {KA['x']}
    s_load_dwordx2 s[8:9], s[0:1], {KA['ws']}
    s_waitcnt lgkmcnt(0)
    ''')
    if src_is_ws:
        srd(k, 12, 8, S * D * 2, src_off)
    else:
        srd(k, 12, 4, S * D * 2)
    srd(k, 16, 8, S * D * 2, dst_off)
    srd(k, 20, 8, 6 * D * 4, WS['MOD'])
    k('''
    v_and_b32 v1, 31, v0
    v_lshrrev_b32 v2, 5, v0
    s_lshl_b32 s3, s2, 3
    v_add_u32 v2, s3, v2
    v_mul_u32_u24 v3, 1152, v2
    v_lshl_add_u32 v3, v1, 2, v3
    v_lshlrev_b32 v4, 3, v1
    ''')
    k(f'v_add_u32 v89, {sc_idx*2304}, v4')
    k(f'v_add_u32 v90, {sh_idx*2304}, v4')
    for j in range(9):
        k(f'buffer_load_dword v{10+j}, v3, s[12:15], 0 offen offset:{128*j}')
    for j in range(9):
        k(f'buffer_load_dwordx2 v[{40+2*j}:{41+2*j}], v89, s[20:23], 0 offen offset:{256*j}')
        k(f'buffer_load_dwordx2 v[{60+2*j}:{61+2*j}], v90, s[20:23], 0 offen offset:{256*j}')
    if pads:
        srd(k, 24, 8, 3 * 4 * MB, WS['QP'])
        k('''
        v_lshlrev_b32 v5, 11, v1
        v_add_u32 v5, v5, v2
        v_lshlrev_b32 v5, 6, v5
        v_add_u32 v5, 36, v5
        v_mov_b32 v80, 0
        v_mov_b32 v81, 0
        v_mov_b32 v82, 0
        v_mov_b32 v83, 0
        buffer_store_dwordx4 v[80:83], v5, s[24:27], 0 offen
        buffer_store_dwordx3 v[80:82], v5, s[24:27], 0 offen offset:16
        v_add_u32 v6, 0x400000, v5
        v_mov_b32 v84, 0x3f803f80
        v_mov_b32 v85, 0
        v_mov_b32 v86, 0
        v_mov_b32 v87, 0
        buffer_store_dwordx4 v[84:87], v6, s[24:27], 0 offen
        buffer_store_dwordx3 v[80:82], v6, s[24:27], 0 offen offset:16
        v_lshlrev_b32 v7, 5, v1
        v_add_u32 v7, 18, v7
        v_lshlrev_b32 v7, 12, v7
        v_lshl_add_u32 v7, v2, 1, v7
        v_add_u32 v7, 0x800000, v7
        v_mov_b32 v88, 0x3f80
        buffer_store_short v88, v7, s[24:27], 0 offen
        ''')
    k('s_waitcnt vmcnt(%d)' % (18 + (5 if pads else 0)))
    for j in range(9):
        k(f'v_lshlrev_b32 v{20+2*j}, 16, v{10+j}')
        k(f'v_and_b32 v{21+2*j}, 0xffff0000, v{10+j}')
    k('v_add_f32 v8, v20, v21')
    for j in range(2, 18):
        k(f'v_add_f32 v8, v8, v{20+j}')

    def reduce32(reg):
        for m in (1, 2, 4, 8, 16):
            k(f'ds_swizzle_b32 v9, v{reg} offset:{(m << 10) | 0x1f}')
            k('s_waitcnt lgkmcnt(0)')
            k(f'v_add_f32 v{reg}, v{reg}, v9')
    reduce32(8)
    k('v_mul_f32 v8, 0x3ae38e39, v8')
    for j in range(18):
        k(f'v_sub_f32 v{20+j}, v{20+j}, v8')
    k('v_mul_f32 v8, v20, v20')
    for j in range(1, 18):
        k(f'v_fmac_f32 v8, v{20+j}, v{20+j}')
    reduce32(8)
    k('''
    v_mov_b32 v9, 0x3727c5ac
    v_fmac_f32 v9, 0x3ae38e39, v8
    v_rsq_f32 v9, v9
    s_waitcnt vmcnt(0)
    ''')
    for j in range(18):
        k(f'v_mul_f32 v{20+j}, v{20+j}, v9')
        k(f'v_fma_f32 v{20+j}, v{20+j}, v{40+j}, v{60+j}')
    for j in range(9):
        k(f'v_cvt_pk_bf16_f32 v{10+j}, v{20+2*j}, v{21+2*j}')
        k(f'buffer_store_dword v{10+j}, v3, s[16:19], 0 offen offset:{128*j}')
    k.label(f'{name}_done')
    k('s_endpgm')
    return k, dict(grid=NWG, block=256, lds=0, vgpr=96)


def gen_gemm(name, a_src, a_off, lda, Kdim, w_args, ldb, N, BM, BN, epi, NBUF=4, mfast=False, WM=2):
    k = K(name)
    NB = len(w_args)
    NW = WM * 2
    TM, TN = BM // (32 * WM), BN // 64
    nmt, nnt = S // BM, (N + BN - 1) // BN
    NWG = nmt * nnt
    assert NWG % 8 == 0
    NST = Kdim // 32
    BLD = BN * 2
    ABUF = BM * 64
    BBUF = 32 * BLD
    STAGE = ABUF + NB * BBUF
    LDS = NBUF * STAGE
    assert LDS <= 160 * 1024
    NA = BM // 16 // NW
    NBC = BN // 16 // NW
    CNT = NA + NB * NBC

    k(f"""
    s_cmp_ge_u32 s2, {NWG}
    s_cbranch_scc1 {name}_done
    s_load_dwordx2 s[8:9], s[0:1], {KA['ws']}
    """)
    if a_src != 'ws':
        k(f's_load_dwordx2 s[4:5], s[0:1], {KA[a_src]}')
    for i, w in enumerate(w_args):
        k(f's_load_dwordx2 s[{36+2*i}:{37+2*i}], s[0:1], {KA[w]}')
    if epi in ('wo',):
        k(f's_load_dwordx2 s[6:7], s[0:1], {KA["x"]}')
    if epi in ('down',):
        k(f's_load_dwordx2 s[6:7], s[0:1], {KA["out"]}')
    k('s_waitcnt lgkmcnt(0)')
    if a_src == 'ws':
        srd(k, 12, 8, S * lda, a_off)
    else:
        srd(k, 12, 4, S * lda)
    for i in range(NB):
        srd(k, 16 + 4 * i, 36 + 2 * i, Kdim * ldb)
    div = nmt if mfast else nnt
    k(f"""
    s_and_b32 s29, s2, 7
    s_mul_i32 s29, s29, {NWG//8}
    s_lshr_b32 s30, s2, 3
    s_add_u32 s29, s29, s30
    s_mov_b32 s30, {(1 << 32) // div + 1}
    s_mul_hi_u32 s31, s29, s30
    s_mul_i32 s32, s31, {div}
    s_sub_u32 s32, s29, s32
    """)
    if mfast:
        k(f's_mul_i32 s33, s32, {BM}')
        k(f's_mul_i32 s34, s31, {BN}')
    else:
        k(f's_mul_i32 s33, s31, {BM}')
        k(f's_mul_i32 s34, s32, {BN}')
    vA = 2
    vB = vA + NA
    vRA = vB + NBC
    vRB = vRA + 2
    vR2 = vRB + TN
    assert vR2 + 2 + TN <= 15
    vFA = 16
    vFB = vFA + 8 * TM
    vACC = vFB + 8 * TN * NB
    vACC = (vACC + 3) // 4 * 4
    nacc = 16 * TM * TN * NB
    vT = vACC + nacc
    nv = vT + 24
    assert nv <= 256, nv
    t = vT

    k('v_and_b32 v1, 63, v0')
    k('v_lshrrev_b32 v15, 6, v0')
    k('s_nop 1')
    k('v_readfirstlane_b32 s45, v15')
    k(f"""
    v_lshrrev_b32 v{t}, 2, v1
    v_and_b32 v{t+1}, 3, v1
    v_lshrrev_b32 v{t+2}, 4, v1
    v_xor_b32 v{t+1}, v{t+1}, v{t+2}
    v_lshl_add_u32 v{t+3}, v15, 4, v{t}
    v_add_u32 v{t+3}, s33, v{t+3}
    v_mov_b32 v{t+4}, {lda}
    """)
    for i in range(NA):
        k(f'v_add_u32 v{t+5}, {16*NW*i}, v{t+3}')
        k(f'v_mul_lo_u32 v{vA+i}, v{t+5}, v{t+4}')
        k(f'v_lshl_add_u32 v{vA+i}, v{t+1}, 4, v{vA+i}')
    if BN == 128:
        k(f"""
        v_lshrrev_b32 v{t}, 4, v1
        v_and_b32 v{t+1}, 15, v1
        v_lshlrev_b32 v{t+2}, 2, v{t}
        v_xor_b32 v{t+1}, v{t+1}, v{t+2}
        v_lshl_add_u32 v{t+3}, v15, 2, v{t}
        """)
        rstep = 4 * NW
    else:
        k(f"""
        v_lshrrev_b32 v{t}, 3, v1
        v_and_b32 v{t+1}, 7, v1
        v_lshrrev_b32 v{t+2}, 4, v1
        v_and_b32 v{t+2}, 1, v{t+2}
        v_lshlrev_b32 v{t+2}, 2, v{t+2}
        v_xor_b32 v{t+1}, v{t+1}, v{t+2}
        v_lshl_add_u32 v{t+3}, v15, 3, v{t}
        """)
        rstep = 8 * NW
    k(f'v_mov_b32 v{t+4}, {ldb}')
    k('s_lshl_b32 s35, s34, 1')
    for i in range(NBC):
        k(f'v_add_u32 v{t+5}, {rstep*i}, v{t+3}')
        k(f'v_mul_lo_u32 v{vB+i}, v{t+5}, v{t+4}')
        k(f'v_lshl_add_u32 v{vB+i}, v{t+1}, 4, v{vB+i}')
        k(f'v_add_u32 v{vB+i}, s35, v{vB+i}')
    k(f"""
    v_lshrrev_b32 v{t}, 1, v15
    v_and_b32 v{t+1}, 1, v15
    v_and_b32 v{t+2}, 31, v1
    v_lshrrev_b32 v{t+3}, 5, v1
    v_mul_u32_u24 v{t+4}, {BM//WM}, v{t}
    v_add_u32 v{t+4}, v{t+4}, v{t+2}
    v_lshlrev_b32 v{t+4}, 6, v{t+4}
    v_lshrrev_b32 v{t+5}, 2, v{t+2}
    v_and_b32 v{t+5}, 3, v{t+5}
    v_xor_b32 v{t+6}, v{t+3}, v{t+5}
    v_lshl_add_u32 v{vRA}, v{t+6}, 4, v{t+4}
    v_xor_b32 v{t+6}, 2, v{t+6}
    v_lshl_add_u32 v{vRA+1}, v{t+6}, 4, v{t+4}
    """)
    k(f"""
    v_and_b32 v{t+5}, 15, v1
    v_lshrrev_b32 v{t+6}, 2, v{t+5}
    v_lshl_add_u32 v{t+7}, v{t+3}, 3, v{t+6}
    v_mul_u32_u24 v{t+7}, {BLD}, v{t+7}
    v_and_b32 v{t+8}, 3, v{t+5}
    v_and_b32 v{t+9}, 1, v{t+8}
    v_lshl_add_u32 v{t+7}, v{t+9}, 3, v{t+7}
    v_add_u32 v{t+7}, {ABUF}, v{t+7}
    v_lshrrev_b32 v{t+8}, 1, v{t+8}
    v_lshrrev_b32 v{t+9}, 4, v1
    v_and_b32 v{t+9}, 1, v{t+9}
    v_lshl_add_u32 v{t+8}, v{t+9}, 1, v{t+8}
    v_lshl_add_u32 v{t+8}, v{t+1}, {2 + (TN - 1)}, v{t+8}
    """)
    if BN == 128:
        k(f'v_lshlrev_b32 v{t+9}, 2, v{t+6}')
    else:
        k(f'v_lshrrev_b32 v{t+9}, 1, v{t+6}')
        k(f'v_lshlrev_b32 v{t+9}, 2, v{t+9}')
    for j in range(TN):
        k(f'v_add_u32 v{t+10}, {4*j}, v{t+8}')
        k(f'v_xor_b32 v{t+10}, v{t+10}, v{t+9}')
        k(f'v_lshl_add_u32 v{vRB+j}, v{t+10}, 4, v{t+7}')
    for i in range(2 + TN):
        k(f'v_add_u32 v{vR2+i}, 0x10000, v{vRA+i}')
    for i in range(nacc):
        k(f'v_mov_b32 v{vACC+i}, 0')
    k('s_lshl_b32 s46, s45, 10')

    def dma(buf):
        for i in range(NA):
            k(f's_add_u32 m0, s46, {buf*STAGE + 1024*NW*i}')
            k('s_nop 0')
            k(f'buffer_load_dwordx4 v{vA+i}, s[12:15], s40 offen lds')
        for b in range(NB):
            for i in range(NBC):
                k(f's_add_u32 m0, s46, {buf*STAGE + ABUF + b*BBUF + 1024*NW*i}')
                k('s_nop 0')
                k(f'buffer_load_dwordx4 v{vB+i}, s[{16+4*b}:{19+4*b}], s41 offen lds')
        k('s_add_u32 s40, s40, 64')
        k(f's_add_u32 s41, s41, {32*ldb}')

    def reads(buf, ks):
        fa = vFA + 4 * TM * ks
        fb = vFB + 4 * TN * NB * ks
        for i in range(TM):
            o = buf * STAGE + i * 2048
            ra = vRA + ks
            if o >= 65536:
                ra = vR2 + ks; o -= 65536
            k(f'ds_read_b128 v[{fa+4*i}:{fa+4*i+3}], v{ra} offset:{o}')
        for b in range(NB):
            for j in range(TN):
                r = fb + 4 * (b * TN + j)
                o = buf * STAGE + b * BBUF + ks * 16 * BLD
                rb = vRB + j
                if o >= 65536:
                    rb = vR2 + 2 + j; o -= 65536
                assert o + 4 * BLD < 65536
                k(f'ds_read_b64_tr_b16 v[{r}:{r+1}], v{rb} offset:{o}')
                k(f'ds_read_b64_tr_b16 v[{r+2}:{r+3}], v{rb} offset:{o+4*BLD}')

    def mfmas(ks):
        fa = vFA + 4 * TM * ks
        fb = vFB + 4 * TN * NB * ks
        for b in range(NB):
            for i in range(TM):
                for j in range(TN):
                    a = vACC + 16 * ((b * TM + i) * TN + j)
                    r = fb + 4 * (b * TN + j)
                    k(f'v_mfma_f32_32x32x16_bf16 v[{a}:{a+15}], v[{r}:{r+3}], v[{fa+4*i}:{fa+4*i+3}], v[{a}:{a+15}]')

    NRD = TM + 2 * TN * NB
    k('s_mov_b32 s40, 0')
    k('s_mov_b32 s41, 0')
    for st in range(NBUF - 1):
        dma(st)
    assert NST % NBUF == 0
    k(f's_mov_b32 s42, {NST//NBUF}')
    k.label(f'{name}_loop')
    for u in range(NBUF):
        k(f's_waitcnt vmcnt({CNT*(NBUF-2)})')
        k('s_barrier')
        import os
        XP = os.environ.get('XP', '')
        if 'r' not in XP:
            reads(u, 0)
            reads(u, 1)
        if 'd' not in XP:
            dma((u + NBUF - 1) % NBUF)
        k(f's_waitcnt lgkmcnt({NRD})')
        if 'm' not in XP:
            mfmas(0)
        k('s_waitcnt lgkmcnt(0)')
        if 'm' not in XP:
            mfmas(1)
    k('s_sub_u32 s42, s42, 1')
    k('s_cmp_lg_u32 s42, 0')
    k(f's_cbranch_scc1 {name}_loop')
    k('s_waitcnt vmcnt(0)')
    k('s_nop 15')

    k(f"""
    v_lshrrev_b32 v{t}, 1, v15
    v_and_b32 v{t+1}, 1, v15
    v_and_b32 v{t+2}, 31, v1
    v_lshrrev_b32 v{t+3}, 5, v1
    v_mul_u32_u24 v{t+4}, {BM//WM}, v{t}
    v_add3_u32 v{t+4}, v{t+4}, v{t+2}, s33
    v_mul_u32_u24 v{t+5}, {BN//2}, v{t+1}
    v_lshl_add_u32 v{t+5}, v{t+3}, 2, v{t+5}
    v_add_u32 v{t+5}, s34, v{t+5}
    """)
    if epi in ('wo', 'down'):
        gidx = 2 if epi == 'wo' else 5
        srd(k, 20, 8, 6 * D * 4, WS['MOD'])
        if epi == 'wo':
            srd(k, 24, 6, S * D * 2)
            srd(k, 28, 8, S * D * 2, WS['X1'])
        else:
            srd(k, 24, 8, S * D * 2, WS['X1'])
            srd(k, 28, 6, S * D * 2)
        for i in range(TM):
            for j in range(TN):
                a = vACC + 16 * (i * TN + j)
                for q in range(4):
                    k(f'v_add_u32 v{t+6}, {j*32+8*q}, v{t+5}')
                    k(f'v_add_u32 v{t+7}, {32*i}, v{t+4}')
                    k(f'v_mul_u32_u24 v{t+8}, 1152, v{t+7}')
                    k(f'v_lshl_add_u32 v{t+8}, v{t+6}, 1, v{t+8}')
                    k(f'v_lshlrev_b32 v{t+9}, 2, v{t+6}')
                    k(f'v_add_u32 v{t+9}, {gidx*2304}, v{t+9}')
                    k(f'buffer_load_dwordx4 v[{t+12}:{t+15}], v{t+9}, s[20:23], 0 offen')
                    k(f'buffer_load_dwordx2 v[{t+10}:{t+11}], v{t+8}, s[24:27], 0 offen')
                    k('s_waitcnt vmcnt(0)')
                    k(f'v_lshlrev_b32 v{t+16}, 16, v{t+10}')
                    k(f'v_and_b32 v{t+17}, 0xffff0000, v{t+10}')
                    k(f'v_lshlrev_b32 v{t+18}, 16, v{t+11}')
                    k(f'v_and_b32 v{t+19}, 0xffff0000, v{t+11}')
                    for e in range(4):
                        k(f'v_fmac_f32 v{t+16+e}, v{a+4*q+e}, v{t+12+e}')
                    k(f'v_cvt_pk_bf16_f32 v{t+10}, v{t+16}, v{t+17}')
                    k(f'v_cvt_pk_bf16_f32 v{t+11}, v{t+18}, v{t+19}')
                    k(f'buffer_store_dwordx2 v[{t+10}:{t+11}], v{t+8}, s[28:31], 0 offen')
    elif epi == 'gu':
        srd(k, 28, 8, S * F * 2, WS['HH'])
        for i in range(TM):
            for j in range(TN):
                a = vACC + 16 * (i * TN + j)
                b = vACC + 16 * ((TM + i) * TN + j)
                for q in range(4):
                    k(f'v_add_u32 v{t+6}, {j*32+8*q}, v{t+5}')
                    k(f'v_add_u32 v{t+7}, {32*i}, v{t+4}')
                    k(f'v_mul_u32_u24 v{t+8}, {F*2}, v{t+7}')
                    k(f'v_lshl_add_u32 v{t+8}, v{t+6}, 1, v{t+8}')
                    for e in range(4):
                        k(f'v_mul_f32 v{t+16+e}, v{a+4*q+e}, v{b+4*q+e}')
                    k(f'v_cvt_pk_bf16_f32 v{t+10}, v{t+16}, v{t+17}')
                    k(f'v_cvt_pk_bf16_f32 v{t+11}, v{t+18}, v{t+19}')
                    k(f'buffer_store_dwordx2 v[{t+10}:{t+11}], v{t+8}, s[28:31], 0 offen')
    elif epi == 'qkv':
        srd(k, 28, 8, 3 * 4 * MB, WS['QP'])
        k('s_mov_b32 s43, 3641')
        k('s_mov_b32 s44, 0x3ead8bd9')
        for i in range(TM):
            k(f'v_add_u32 v{t+7}, {32*i}, v{t+4}')
            k(f'v_lshlrev_b32 v{t+20}, 6, v{t+7}')
            k(f'v_and_b32 v{t+21}, 4, v{t+7}')
            k(f'v_and_b32 v{t+22}, 8, v{t+7}')
            k(f'v_and_b32 v{t+23}, 0xfffffff3, v{t+7}')
            k(f'v_lshl_add_u32 v{t+23}, v{t+21}, 1, v{t+23}')
            k(f'v_lshrrev_b32 v{t+22}, 1, v{t+22}')
            k(f'v_add_u32 v{t+23}, v{t+23}, v{t+22}')
            k(f'v_lshlrev_b32 v{t+23}, 1, v{t+23}')
            for j in range(TN):
                a = vACC + 16 * (i * TN + j)
                for q in range(4):
                    for e in range(4):
                        k(f'v_add_u32 v{t+6}, {j*32+8*q+e}, v{t+5}')
                        k(f'v_mul_u32_u24 v{t+8}, s43, v{t+6}')
                        k(f'v_lshrrev_b32 v{t+8}, 16, v{t+8}')
                        k(f'v_mul_u32_u24 v{t+9}, 18, v{t+8}')
                        k(f'v_sub_u32 v{t+9}, v{t+6}, v{t+9}')
                        k(f'v_lshlrev_b32 v{t+10}, 17, v{t+8}')
                        k(f'v_lshl_add_u32 v{t+11}, v{t+9}, 12, v{t+10}')
                        k(f'v_lshl_add_u32 v{t+10}, v{t+9}, 1, v{t+10}')
                        k(f'v_add_u32 v{t+10}, v{t+10}, v{t+20}')
                        k(f'v_add_u32 v{t+11}, v{t+11}, v{t+23}')
                        k(f'v_cmp_gt_u32 vcc, 64, v{t+8}')
                        k(f'v_cndmask_b32 v{t+10}, v{t+11}, v{t+10}, vcc')
                        k(f'v_mul_f32 v{t+12}, s44, v{a+4*q+e}')
                        k(f'v_cmp_gt_u32 vcc, 32, v{t+8}')
                        k(f'v_cndmask_b32 v{t+12}, v{a+4*q+e}, v{t+12}, vcc')
                        k(f'v_cvt_pk_bf16_f32 v{t+12}, v{t+12}, v{t+12}')
                        k(f'v_cmp_gt_u32 vcc, {N}, v{t+6}')
                        k(f'v_cndmask_b32 v{t+10}, -1, v{t+10}, vcc')
                        k(f'buffer_store_short v{t+12}, v{t+10}, s[28:31], 0 offen')
    k.label(f'{name}_done')
    k('s_endpgm')
    return k, dict(grid=NWG, block=64 * NW, lds=LDS, vgpr=nv)


def gen_attn():
    name = 'attn_kernel'
    k = K(name)
    NWG = 256
    KT = 128
    NBUF = 4
    KBUF = KT * 64
    VBUF = 32 * KT * 2
    STAGE = KBUF + VBUF
    LDS = NBUF * STAGE
    NST = S // KT
    k(f"""
    s_cmp_ge_u32 s2, {NWG}
    s_cbranch_scc1 {name}_done
    s_load_dwordx2 s[8:9], s[0:1], {KA['ws']}
    s_waitcnt lgkmcnt(0)
    """)
    srd(k, 12, 8, 4 * MB, WS['QP'])
    srd(k, 16, 8, 4 * MB, WS['KP'])
    srd(k, 20, 8, 4 * MB, WS['VT'])
    srd(k, 24, 8, S * D * 2, WS['O'])
    k("""
    s_and_b32 s29, s2, 7
    s_lshl_b32 s29, s29, 5
    s_lshr_b32 s30, s2, 3
    s_add_u32 s29, s29, s30
    s_lshr_b32 s30, s29, 3
    s_and_b32 s31, s29, 7
    s_lshl_b32 s32, s30, 17
    s_lshl_b32 s33, s31, 14
    s_add_u32 s33, s33, s32
    v_and_b32 v1, 63, v0
    v_lshrrev_b32 v2, 6, v0
    v_and_b32 v3, 31, v1
    v_lshrrev_b32 v4, 5, v1
    v_readfirstlane_b32 s45, v2
    v_lshl_add_u32 v5, v2, 5, v3
    v_lshlrev_b32 v5, 6, v5
    v_lshl_add_u32 v5, v4, 4, v5
    v_add_u32 v5, s33, v5
    buffer_load_dwordx4 v[16:19], v5, s[12:15], 0 offen
    buffer_load_dwordx4 v[20:23], v5, s[12:15], 0 offen offset:32
    s_lshl_b32 s46, s45, 10
    """)
    k("""
    v_lshrrev_b32 v6, 2, v1
    v_lshl_add_u32 v6, v2, 4, v6
    v_lshlrev_b32 v6, 6, v6
    v_and_b32 v7, 3, v1
    v_lshrrev_b32 v8, 4, v1
    v_xor_b32 v7, v7, v8
    v_lshl_add_u32 v6, v7, 4, v6
    v_add_u32 v6, s32, v6
    v_lshl_add_u32 v9, v2, 2, v8
    v_and_b32 v10, 15, v1
    v_and_b32 v11, 15, v9
    v_xor_b32 v10, v10, v11
    v_lshlrev_b32 v11, 12, v9
    v_lshl_add_u32 v11, v10, 4, v11
    v_add_u32 v11, s32, v11
    """)
    k(f"""
    v_lshrrev_b32 v7, 2, v3
    v_and_b32 v7, 3, v7
    v_xor_b32 v7, v7, v4
    v_lshlrev_b32 v12, 6, v3
    v_lshl_add_u32 v13, v7, 4, v12
    v_xor_b32 v7, 2, v7
    v_lshl_add_u32 v14, v7, 4, v12
    v_mov_b32 v12, v13
    v_and_b32 v7, 15, v3
    v_mov_b32 v15, 0xff800000
    """)
    vVA = 88
    for blk in range(8):
        k(f'v_add_u32 v8, {2*blk}, v4')
        k(f'v_xor_b32 v8, v8, v7')
        k(f'v_lshlrev_b32 v{vVA+blk}, 8, v3')
        k(f'v_lshl_add_u32 v{vVA+blk}, v8, 4, v{vVA+blk}')
        k(f'v_add_u32 v{vVA+blk}, {KBUF}, v{vVA+blk}')
    vQ = 16
    vKF = 24
    vVF = 32
    vS = [40, 56]
    vP = 72
    vO = 96
    nv = 112

    def kdma(buf):
        k(f's_add_u32 m0, s46, {buf*STAGE}')
        k('s_nop 0')
        k('buffer_load_dwordx4 v6, s[16:19], s40 offen lds')
        k(f's_add_u32 s40, s40, {KT*64}')

    def vdma(buf):
        k(f's_add_u32 m0, s46, {buf*STAGE+KBUF}')
        k('s_nop 0')
        k('buffer_load_dwordx4 v11, s[20:23], s41 offen lds')
        k(f's_add_u32 s41, s41, {KT*2}')

    def kread(buf, kt):
        o = buf * STAGE + kt * 2048
        k(f'ds_read_b128 v[{vKF}:{vKF+3}], v12 offset:{o}')
        k(f'ds_read_b128 v[{vKF+4}:{vKF+7}], v14 offset:{o}')

    def qk(sv):
        k(f'v_mfma_f32_32x32x16_bf16 v[{sv}:{sv+15}], v[{vKF}:{vKF+3}], v[{vQ}:{vQ+3}], 0')
        k(f'v_mfma_f32_32x32x16_bf16 v[{sv}:{sv+15}], v[{vKF+4}:{vKF+7}], v[{vQ+4}:{vQ+7}], v[{sv}:{sv+15}]')

    k('s_mov_b32 s40, 0')
    k('s_waitcnt vmcnt(0)')
    for st in range(NBUF - 1):
        kdma(st)
    import os
    k(f's_mov_b32 s42, {1 if "p" in os.environ.get("XP", "") else NST//NBUF}')
    k.label('attn_p1')
    for u in range(NBUF):
        k(f's_waitcnt vmcnt({NBUF-2})')
        k('s_barrier')
        kread(u, 0)
        kdma((u + NBUF - 1) % NBUF)
        k('s_waitcnt lgkmcnt(0)')
        qk(vS[0])
        for kt in range(4):
            if kt < 3:
                kread(u, kt + 1)
                k('s_waitcnt lgkmcnt(0)')
                qk(vS[(kt + 1) & 1])
                k('s_nop 9')
            else:
                k('s_nop 15')
            sv = vS[kt & 1]
            for r in range(0, 16, 2):
                k(f'v_max3_f32 v15, v15, v{sv+r}, v{sv+r+1}')
    k('s_sub_u32 s42, s42, 1')
    k('s_cmp_lg_u32 s42, 0')
    k('s_cbranch_scc1 attn_p1')
    k("""
    s_waitcnt vmcnt(0)
    v_mov_b32 v48, v15
    s_nop 1
    v_permlane32_swap_b32 v48, v15
    v_max_f32 v15, v15, v48
    """)
    k(f"""
    v_cvt_pk_bf16_f32 v49, v15, v15
    v_lshlrev_b32 v50, 16, v49
    v_sub_f32 v50, v15, v50
    v_cvt_pk_bf16_f32 v50, v50, v50
    v_and_b32 v49, 0xffff, v49
    v_lshl_or_b32 v49, v50, 16, v49
    v_xor_b32 v49, 0x80008000, v49
    v_cmp_gt_u32 vcc, 32, v1
    v_cndmask_b32 v{vQ+5}, v{vQ+5}, v49, vcc
    s_barrier
    """)
    for r in range(16):
        k(f'v_mov_b32 v{vO+r}, 0')
    k('s_mov_b32 s40, 0')
    k('s_mov_b32 s41, 0')
    for st in range(NBUF - 1):
        kdma(st)
        vdma(st)
    k(f's_mov_b32 s42, {NST//NBUF}')
    k.label('attn_p2')
    for u in range(NBUF):
        k(f's_waitcnt vmcnt({2*(NBUF-2)})')
        k('s_barrier')
        kread(u, 0)
        kdma((u + NBUF - 1) % NBUF)
        vdma((u + NBUF - 1) % NBUF)
        k('s_waitcnt lgkmcnt(0)')
        qk(vS[0])
        for kt in range(4):
            if kt < 3:
                kread(u, kt + 1)
            k(f'ds_read_b128 v[{vVF}:{vVF+3}], v{vVA+2*kt} offset:{u*STAGE}')
            k(f'ds_read_b128 v[{vVF+4}:{vVF+7}], v{vVA+2*kt+1} offset:{u*STAGE}')
            if kt < 3:
                k('s_waitcnt lgkmcnt(2)')
                qk(vS[(kt + 1) & 1])
                k('s_nop 7')
            else:
                k('s_nop 13')
            sv = vS[kt & 1]
            import os
            if 'e' not in os.environ.get('XP', ''):
                for r in range(16):
                    k(f'v_exp_f32 v{sv+r}, v{sv+r}')
            for r in range(8):
                k(f'v_cvt_pk_bf16_f32 v{vP+r}, v{sv+2*r}, v{sv+2*r+1}')
            k('s_waitcnt lgkmcnt(0)')
            k(f'v_mfma_f32_32x32x16_bf16 v[{vO}:{vO+15}], v[{vVF}:{vVF+3}], v[{vP}:{vP+3}], v[{vO}:{vO+15}]')
            k(f'v_mfma_f32_32x32x16_bf16 v[{vO}:{vO+15}], v[{vVF+4}:{vVF+7}], v[{vP+4}:{vP+7}], v[{vO}:{vO+15}]')
    k('s_sub_u32 s42, s42, 1')
    k('s_cmp_lg_u32 s42, 0')
    k('s_cbranch_scc1 attn_p2')
    k('s_waitcnt vmcnt(0)')
    k('s_nop 15')
    k(f"""
    v_mov_b32 v48, v{vO+10}
    v_mov_b32 v49, v{vO+10}
    s_nop 1
    v_permlane32_swap_b32 v48, v49
    v_rcp_f32 v48, v48
    s_mul_i32 s34, s30, 36
    s_lshl_b32 s35, s31, 8
    v_lshl_add_u32 v50, v2, 5, v3
    v_add_u32 v50, s35, v50
    v_mul_u32_u24 v50, 1152, v50
    v_lshl_add_u32 v50, v4, 3, v50
    v_add_u32 v50, s34, v50
    """)
    for r in range(12):
        k(f'v_mul_f32 v{vO+r}, v{vO+r}, v48')
    for i in range(3):
        k(f'v_cvt_pk_bf16_f32 v{vP+2*i}, v{vO+4*i}, v{vO+4*i+1}')
        k(f'v_cvt_pk_bf16_f32 v{vP+2*i+1}, v{vO+4*i+2}, v{vO+4*i+3}')
    k(f'buffer_store_dword v{vP}, v50, s[24:27], 0 offen')
    k(f'buffer_store_dword v{vP+1}, v50, s[24:27], 0 offen offset:4')
    k(f'buffer_store_dword v{vP+2}, v50, s[24:27], 0 offen offset:16')
    k(f'buffer_store_dword v{vP+3}, v50, s[24:27], 0 offen offset:20')
    k('v_cmp_gt_u32 vcc, 32, v1')
    k('s_and_saveexec_b64 s[36:37], vcc')
    k(f'buffer_store_dword v{vP+4}, v50, s[24:27], 0 offen offset:32')
    k('s_mov_b64 exec, s[36:37]')
    k.label(f'{name}_done')
    k('s_endpgm')
    return k, dict(grid=NWG, block=512, lds=LDS, vgpr=nv)


def gen_gemm16(name, a_off, lda, Kdim, w_args, ldb, N, BM, BN, NW, epi, NBUF=3, mfast=False, KS=1):
    k = K(name)
    NB = len(w_args)
    TMm, TNn = BM // 16 // NW, BN // 16
    nmt, nnt = S // BM, N // BN
    NT = nmt * nnt
    NWG = NT * KS
    assert NWG % 8 == 0
    KL = Kdim // KS
    NST = KL // 32
    assert NST % NBUF == 0
    BLD = BN * 2
    cpr = BN // 8
    ABUF = BM * 64
    nbi = 32 * cpr // 64
    remc = 32 * cpr - 64 * (nbi // NW * NW)
    NBF = nbi // NW
    assert remc % NW == 0
    rl = remc // NW
    BBUF = 32 * BLD
    STAGE = ABUF + NB * BBUF
    LDS = NBUF * STAGE
    assert LDS <= 160 * 1024
    NA = BM // 16 // NW
    NBD = NBF + (1 if rl else 0)
    CNT = NA + NB * NBD

    k(f"""
    s_cmp_ge_u32 s2, {NWG}
    s_cbranch_scc1 {name}_done
    s_load_dwordx2 s[8:9], s[0:1], {KA['ws']}
    """)
    for i, w in enumerate(w_args):
        k(f's_load_dwordx2 s[{36+2*i}:{37+2*i}], s[0:1], {KA[w]}')
    k('s_waitcnt lgkmcnt(0)')
    srd(k, 12, 8, S * lda, a_off)
    for i in range(NB):
        srd(k, 16 + 4 * i, 36 + 2 * i, Kdim * ldb)
    div = nmt if mfast else nnt
    k(f"""
    s_and_b32 s29, s2, 7
    s_mul_i32 s29, s29, {NWG//8}
    s_lshr_b32 s30, s2, 3
    s_add_u32 s29, s29, s30
    """)
    if KS > 1:
        assert KS & (KS - 1) == 0
        k(f's_and_b32 s47, s29, {KS-1}')
        k(f's_lshr_b32 s29, s29, {KS.bit_length()-1}')
    else:
        k('s_mov_b32 s47, 0')
    k(f"""
    s_mov_b32 s30, {(1 << 32) // div + 1}
    s_mul_hi_u32 s31, s29, s30
    s_mul_i32 s32, s31, {div}
    s_sub_u32 s32, s29, s32
    """)
    if mfast:
        k(f's_mul_i32 s33, s32, {BM}')
        k(f's_mul_i32 s34, s31, {BN}')
    else:
        k(f's_mul_i32 s33, s31, {BM}')
        k(f's_mul_i32 s34, s32, {BN}')
    vA = 2
    vB = vA + NA
    vRA = vB + NBD
    vRB = vRA + 1
    vR2 = vRB + 1
    assert vR2 + 2 <= 15
    vFA = 16
    vFB = vFA + 4 * TMm
    vACC = vFB + 4 * TNn * NB
    vACC = (vACC + 3) // 4 * 4
    nacc = 4 * TMm * TNn * NB
    vT = vFA
    assert vACC - vFA >= 24
    nv = vACC + nacc
    assert nv <= 256, nv
    t = vT
    k('v_and_b32 v1, 63, v0')
    k('v_lshrrev_b32 v15, 6, v0')
    k('s_nop 1')
    k('v_readfirstlane_b32 s45, v15')
    k(f"""
    v_lshrrev_b32 v{t}, 2, v1
    v_and_b32 v{t+1}, 3, v1
    v_lshrrev_b32 v{t+2}, 4, v1
    v_xor_b32 v{t+1}, v{t+1}, v{t+2}
    v_lshl_add_u32 v{t+3}, v15, 4, v{t}
    v_add_u32 v{t+3}, s33, v{t+3}
    v_mov_b32 v{t+4}, {lda}
    """)
    for i in range(NA):
        k(f'v_add_u32 v{t+5}, {16*NW*i}, v{t+3}')
        k(f'v_mul_lo_u32 v{vA+i}, v{t+5}, v{t+4}')
        k(f'v_lshl_add_u32 v{vA+i}, v{t+1}, 4, v{vA+i}')
    k(f'v_mov_b32 v{t+4}, {ldb}')
    k('s_lshl_b32 s35, s34, 1')
    k(f'v_mov_b32 v{t+6}, {(1<<20)//cpr + 1}')
    for i in range(NBD):
        if i < NBF:
            k(f'v_lshl_add_u32 v{t}, v15, 6, v1')
            k(f'v_add_u32 v{t}, {64*NW*i}, v{t}')
        else:
            k(f'v_mul_u32_u24 v{t}, {rl}, v15')
            k(f'v_add_u32 v{t}, v{t}, v1')
            k(f'v_add_u32 v{t}, {64*NW*NBF}, v{t}')
        k(f'v_mul_u32_u24 v{t+1}, v{t}, v{t+6}')
        k(f'v_lshrrev_b32 v{t+1}, 20, v{t+1}')
        k(f'v_mul_u32_u24 v{t+2}, {cpr}, v{t+1}')
        k(f'v_sub_u32 v{t+2}, v{t}, v{t+2}')
        k(f'v_mul_lo_u32 v{vB+i}, v{t+1}, v{t+4}')
        k(f'v_lshl_add_u32 v{vB+i}, v{t+2}, 4, v{vB+i}')
        k(f'v_add_u32 v{vB+i}, s35, v{vB+i}')
    k(f"""
    v_and_b32 v{t+2}, 15, v1
    v_lshrrev_b32 v{t+3}, 4, v1
    v_mul_u32_u24 v{t+4}, {16*TMm}, v15
    v_add_u32 v{t+4}, v{t+4}, v{t+2}
    v_lshlrev_b32 v{t+4}, 6, v{t+4}
    v_lshrrev_b32 v{t+5}, 2, v{t+2}
    v_xor_b32 v{t+6}, v{t+3}, v{t+5}
    v_lshl_add_u32 v{vRA}, v{t+6}, 4, v{t+4}
    v_lshl_add_u32 v{t+7}, v{t+3}, 3, v{t+5}
    v_mul_u32_u24 v{t+7}, {BLD}, v{t+7}
    v_and_b32 v{t+8}, 3, v{t+2}
    v_lshl_add_u32 v{vRB}, v{t+8}, 3, v{t+7}
    v_add_u32 v{vRB}, {ABUF}, v{vRB}
    v_add_u32 v{vR2}, 0x10000, v{vRA}
    v_add_u32 v{vR2+1}, 0x10000, v{vRB}
    """)
    for i in range(nacc):
        k(f'v_mov_b32 v{vACC+i}, 0')
    k('s_lshl_b32 s46, s45, 10')
    if rl:
        k(f's_mul_i32 s48, s45, {rl*16}')
        k(f's_mov_b64 s[50:51], {(1<<rl)-1}')

    def dma(buf):
        for i in range(NA):
            k(f's_add_u32 m0, s46, {buf*STAGE + 1024*NW*i}')
            k('s_nop 0')
            k(f'buffer_load_dwordx4 v{vA+i}, s[12:15], s40 offen lds')
        for b in range(NB):
            for i in range(NBD):
                if i < NBF:
                    k(f's_add_u32 m0, s46, {buf*STAGE + ABUF + b*BBUF + 1024*NW*i}')
                    k('s_nop 0')
                    k(f'buffer_load_dwordx4 v{vB+i}, s[{16+4*b}:{19+4*b}], s41 offen lds')
                else:
                    k(f's_add_u32 m0, s48, {buf*STAGE + ABUF + b*BBUF + 1024*NW*NBF}')
                    k('s_mov_b64 exec, s[50:51]')
                    k(f'buffer_load_dwordx4 v{vB+i}, s[{16+4*b}:{19+4*b}], s41 offen lds')
                    k('s_mov_b64 exec, -1')
        k('s_add_u32 s40, s40, 64')
        k(f's_add_u32 s41, s41, {32*ldb}')

    def rd(base, base2, o):
        return (base, o) if o < 65536 - 8 * BLD else (base2, o - 65536)

    k(f's_mul_i32 s40, s47, {KL*2}')
    k(f's_mul_i32 s41, s47, {KL*ldb}')
    for st in range(NBUF - 1):
        dma(st)
    k(f's_mov_b32 s42, {NST//NBUF}')
    k.label(f'{name}_loop')
    for u in range(NBUF):
        k(f's_waitcnt vmcnt({CNT*(NBUF-2)})')
        k('s_barrier')
        for i in range(TMm):
            o = u * STAGE + i * 1024
            ra = vRA
            if o >= 65536:
                ra = vR2; o -= 65536
            k(f'ds_read_b128 v[{vFA+4*i}:{vFA+4*i+3}], v{ra} offset:{o}')
        nrd = 0
        for b in range(NB):
            for j in range(TNn):
                r = vFB + 4 * (b * TNn + j)
                o = u * STAGE + b * BBUF + j * 32
                rb = vRB
                if o >= 65536:
                    rb = vR2 + 1; o -= 65536
                assert o + 4 * BLD < 65536
                k(f'ds_read_b64_tr_b16 v[{r}:{r+1}], v{rb} offset:{o}')
                k(f'ds_read_b64_tr_b16 v[{r+2}:{r+3}], v{rb} offset:{o+4*BLD}')
                nrd += 2
        dma((u + NBUF - 1) % NBUF)
        done = 0
        for b in range(NB):
            for j in range(TNn):
                done += 2
                k(f's_waitcnt lgkmcnt({min(15, nrd - done)})')
                r = vFB + 4 * (b * TNn + j)
                for i in range(TMm):
                    a = vACC + 4 * ((b * TMm + i) * TNn + j)
                    k(f'v_mfma_f32_16x16x32_bf16 v[{a}:{a+3}], v[{r}:{r+3}], v[{vFA+4*i}:{vFA+4*i+3}], v[{a}:{a+3}]')
    k('s_sub_u32 s42, s42, 1')
    k('s_cmp_lg_u32 s42, 0')
    k(f's_cbranch_scc1 {name}_loop')
    k('s_waitcnt vmcnt(0)')
    k('s_nop 15')
    k(f"""
    v_and_b32 v{t+2}, 15, v1
    v_lshrrev_b32 v{t+3}, 4, v1
    v_mul_u32_u24 v{t+4}, {16*TMm}, v15
    v_add3_u32 v{t+4}, v{t+4}, v{t+2}, s33
    v_lshl_add_u32 v{t+5}, v{t+3}, 2, s34
    """)
    if epi == 'gu':
        srd(k, 28, 8, S * F * 2, WS['HH'])
        for i in range(TMm):
            k(f'v_add_u32 v{t+7}, {16*i}, v{t+4}')
            k(f'v_mul_u32_u24 v{t+8}, {F*2}, v{t+7}')
            k(f'v_lshl_add_u32 v{t+8}, v{t+5}, 1, v{t+8}')
            for j in range(TNn):
                a = vACC + 4 * (i * TNn + j)
                b = vACC + 4 * ((TMm + i) * TNn + j)
                for e in range(4):
                    k(f'v_mul_f32 v{t+16+e}, v{a+e}, v{b+e}')
                k(f'v_cvt_pk_bf16_f32 v{t+10}, v{t+16}, v{t+17}')
                k(f'v_cvt_pk_bf16_f32 v{t+11}, v{t+18}, v{t+19}')
                k(f'buffer_store_dwordx2 v[{t+10}:{t+11}], v{t+8}, s[28:31], 0 offen offset:{32*j}')
                k('s_nop 0')
    elif epi == 'part':
        srd(k, 28, 8, KS * S * D * 4, WS['PART'])
        k(f's_mul_i32 s49, s47, {S*D*4}')
        for i in range(TMm):
            k(f'v_add_u32 v{t+7}, {16*i}, v{t+4}')
            k(f'v_mul_u32_u24 v{t+8}, {D*4}, v{t+7}')
            k(f'v_lshl_add_u32 v{t+8}, v{t+5}, 2, v{t+8}')
            for j in range(TNn):
                a = vACC + 4 * (i * TNn + j)
                k(f'buffer_store_dwordx4 v[{a}:{a+3}], v{t+8}, s[28:31], s49 offen offset:{64*j}')
    k.label(f'{name}_done')
    k('s_endpgm')
    return k, dict(grid=NWG, block=64 * NW, lds=LDS, vgpr=nv)


def gen_final(KS):
    name = 'final_kernel'
    k = K(name)
    NWG = S * D // 4 // 256
    k(f"""
    s_cmp_ge_u32 s2, {NWG}
    s_cbranch_scc1 {name}_done
    s_load_dwordx2 s[6:7], s[0:1], {KA['out']}
    s_load_dwordx2 s[8:9], s[0:1], {KA['ws']}
    s_waitcnt lgkmcnt(0)
    """)
    srd(k, 12, 8, KS * S * D * 4, WS['PART'])
    srd(k, 16, 8, S * D * 2, WS['X1'])
    srd(k, 20, 8, 6 * D * 4, WS['MOD'])
    srd(k, 24, 6, S * D * 2)
    k("""
    s_lshl_b32 s3, s2, 8
    v_add_u32 v1, s3, v0
    v_lshlrev_b32 v2, 4, v1
    v_lshlrev_b32 v3, 3, v1
    v_mov_b32 v4, 0x38e38e4
    v_mul_hi_u32 v4, v1, v4
    v_mul_u32_u24 v5, 144, v4
    v_sub_u32 v5, v1, v5
    v_lshlrev_b32 v5, 4, v5
    v_add_u32 v5, 11520, v5
    buffer_load_dwordx4 v[8:11], v5, s[20:23], 0 offen
    buffer_load_dwordx2 v[12:13], v3, s[16:19], 0 offen
    """)
    for ks in range(KS):
        k(f's_mov_b32 s30, {ks*S*D*4}')
        k(f'buffer_load_dwordx4 v[{16+4*ks}:{19+4*ks}], v2, s[12:15], s30 offen')
    k('s_waitcnt vmcnt(0)')
    for ks in range(1, KS):
        for e in range(4):
            k(f'v_add_f32 v{16+e}, v{16+e}, v{16+4*ks+e}')
    k("""
    v_lshlrev_b32 v40, 16, v12
    v_and_b32 v41, 0xffff0000, v12
    v_lshlrev_b32 v42, 16, v13
    v_and_b32 v43, 0xffff0000, v13
    """)
    for e in range(4):
        k(f'v_fmac_f32 v{40+e}, v{16+e}, v{8+e}')
    k("""
    v_cvt_pk_bf16_f32 v12, v40, v41
    v_cvt_pk_bf16_f32 v13, v42, v43
    buffer_store_dwordx2 v[12:13], v3, s[24:27], 0 offen
    """)
    k.label(f'{name}_done')
    k('s_endpgm')
    return k, dict(grid=NWG, block=256, lds=0, vgpr=48)


def main():
    kernels = []
    kernels.append(gen_mod())
    kernels.append(gen_ln('ln1_kernel', False, 0, WS['H1'], 1, 0, True))
    kernels.append(gen_gemm('qkv_kernel', 'ws', WS['H1'], 1152, 576, ['wqkv'], 3456, 1728, 128, 128, 'qkv', NBUF=3))
    kernels.append(gen_attn())
    kernels.append(gen_gemm('wo_kernel', 'ws', WS['O'], 1152, 576, ['wo'], 1152, 576, 64, 64, 'wo', NBUF=3))
    kernels.append(gen_ln('ln2_kernel', True, WS['X1'], WS['H2'], 4, 3, False))
    kernels.append(gen_gemm16('gu_kernel', WS['H2'], 1152, 576, ['wg', 'wu'], 9216, 4608, 256, 144, 8, 'gu', NBUF=3, mfast=True))
    kernels.append(gen_gemm('down_kernel', 'ws', WS['HH'], 9216, 4608, ['wd'], 1152, 576, 64, 64, 'down', NBUF=4))

    out = []
    hdr = open(f'cdna_kernels/{NAME}.s.ref').read().split('; Override launch')[0]
    out.append(hdr.rstrip('\n'))
    for k, m in kernels:
        out.append(f"; @launch kernel={k.name} grid=({m['grid']},1,1) block=({m['block']},1,1) lds={m['lds']}")
    out.append('.amdgcn_target "amdgcn-amd-amdhsa--gfx950"')
    out.append('.text')
    for k, m in kernels:
        out.append(k.text(m['vgpr']))
    out.append('.section .rodata,"a"')
    for k, m in kernels:
        out.append('.p2align 6')
        out.append(desc(k.name, m['vgpr']))
    open(f'cdna_kernels/{NAME}.s', 'w').write('\n'.join(out))
    json.dump(WS, open('wslayout.json', 'w'))


if __name__ == '__main__':
    main()
```

```python
import json, sys

NAME = 'adaLN_cond__mha_block__glu_gated_bilinear__prompt'
S, D, H, DH, F = 2048, 576, 32, 18, 4608

KA = dict(x=0, wqkv=8, wo=16, bx=24, wg=32, wu=40, wd=48, c=56, wmod=64, out=72, dbg=80, ws=88)

MB = 1 << 20
WS = dict(MOD=0, H1=1 * MB, QP=4 * MB, KP=8 * MB, VT=12 * MB, O=16 * MB, X1=20 * MB, H2=24 * MB, HH=32 * MB, PART=64 * MB)
WS_BYTES = 256 * MB


class K:
    def __init__(self, name):
        self.name = name
        self.l = []
        self.maxv = 0
        self.maxs = 0

    def __call__(self, s):
        for line in s.strip('\n').split('\n'):
            self.l.append('    ' + line.strip())

    def label(self, s):
        self.l.append(s + ':')

    def text(self, nvgpr, nsgpr=102, accum=None):
        hdr = [f'.globl {self.name}', '.p2align 8', f'.type {self.name},@function', f'{self.name}:']
        return '\n'.join(hdr + self.l) + '\n'


def srd(k, s, ptr_s, nbytes, off=0):
    if off:
        k(f's_add_u32 s{s}, s{ptr_s}, {off}')
        k(f's_addc_u32 s{s+1}, s{ptr_s+1}, 0')
    else:
        k(f's_mov_b32 s{s}, s{ptr_s}')
        k(f's_mov_b32 s{s+1}, s{ptr_s+1}')
    k(f's_mov_b32 s{s+2}, {nbytes}')
    k(f's_mov_b32 s{s+3}, 0x00020000')


def desc(name, nvgpr, nsgpr=102):
    acc = (nvgpr + 3) // 4 * 4
    return f'''.amdhsa_kernel {name}
  .amdhsa_next_free_vgpr {nvgpr}
  .amdhsa_next_free_sgpr {nsgpr}
  .amdhsa_accum_offset {acc}
  .amdhsa_group_segment_fixed_size 0
  .amdhsa_kernarg_size 96
  .amdhsa_user_sgpr_count 2
  .amdhsa_user_sgpr_kernarg_segment_ptr 1
  .amdhsa_system_sgpr_workgroup_id_x 1
.end_amdhsa_kernel
'''


def gen_mod():
    k = K('mod_kernel')
    NWG = 27
    k(f'''
    s_cmp_ge_u32 s2, {NWG}
    s_cbranch_scc1 mod_done
    s_load_dwordx2 s[4:5], s[0:1], {KA['c']}
    s_load_dwordx2 s[6:7], s[0:1], {KA['wmod']}
    s_load_dwordx2 s[8:9], s[0:1], {KA['ws']}
    s_waitcnt lgkmcnt(0)
    ''')
    srd(k, 12, 4, D * 2)
    srd(k, 16, 6, D * 6 * D * 2)
    srd(k, 20, 8, 6 * D * 4, WS['MOD'])
    k('''
    v_lshlrev_b32 v1, 1, v0
    buffer_load_ushort v2, v1, s[12:15], 0 offen
    v_lshlrev_b32 v3, 2, v0
    s_waitcnt vmcnt(0)
    v_lshlrev_b32 v2, 16, v2
    v_mul_f32 v4, 0xbfb8aa3b, v2
    v_exp_f32 v4, v4
    s_nop 0
    v_add_f32 v4, 1.0, v4
    v_rcp_f32 v4, v4
    s_nop 0
    v_mul_f32 v4, v2, v4
    v_cvt_pk_bf16_f32 v4, v4, v4
    v_lshlrev_b32 v4, 16, v4
    v_cmp_gt_u32 vcc, 576, v0
    s_and_saveexec_b64 s[10:11], vcc
    ds_write_b32 v3, v4
    s_mov_b64 exec, s[10:11]
    s_waitcnt lgkmcnt(0)
    s_barrier
    v_lshrrev_b32 v5, 6, v0
    v_and_b32 v6, 63, v0
    s_lshl_b32 s3, s2, 8
    v_mov_b32 v7, 36*6912
    v_mul_lo_u32 v7, v5, v7
    v_lshlrev_b32 v8, 2, v6
    v_add3_u32 v7, v7, v8, s3
    v_mul_u32_u24 v9, 144, v5
    ''')
    for j in range(36):
        k(f'buffer_load_dword v{16+j}, v7, s[16:19], 0 offen')
        k(f'v_add_u32 v7, 6912, v7')
    for j in range(36):
        k(f'ds_read_b32 v{60+j}, v9 offset:{4*j}')
    k('''
    v_mov_b32 v10, 0
    v_mov_b32 v11, 0
    s_waitcnt vmcnt(0) lgkmcnt(0)
    ''')
    for j in range(36):
        k(f'v_lshlrev_b32 v12, 16, v{16+j}')
        k(f'v_and_b32 v13, 0xffff0000, v{16+j}')
        k(f'v_fmac_f32 v10, v12, v{60+j}')
        k(f'v_fmac_f32 v11, v13, v{60+j}')
    k('''
    v_lshlrev_b32 v12, 9, v5
    v_lshl_add_u32 v12, v6, 3, v12
    ds_write_b64 v12, v[10:11] offset:4096
    s_waitcnt lgkmcnt(0)
    s_barrier
    v_cmp_gt_u32 vcc, 128, v0
    s_and_saveexec_b64 s[10:11], vcc
    s_cbranch_execz mod_end
    v_lshlrev_b32 v12, 2, v0
    ''')
    for j in range(16):
        k(f'ds_read_b32 v{16+j}, v12 offset:{4096+512*j}')
    k('s_waitcnt lgkmcnt(0)')
    for j in range(1, 16):
        k(f'v_add_f32 v16, v16, v{16+j}')
    k('''
    v_cvt_pk_bf16_f32 v16, v16, v16
    v_lshlrev_b32 v16, 16, v16
    s_lshl_b32 s3, s2, 7
    v_add_u32 v13, s3, v0
    v_mov_b32 v14, 0
    v_subrev_u32 v15, 576, v13
    v_cmp_gt_u32 vcc, 576, v15
    v_cndmask_b32 v14, v14, 1.0, vcc
    v_subrev_u32 v15, 2304, v13
    v_cmp_gt_u32 vcc, 576, v15
    v_cndmask_b32 v14, v14, 1.0, vcc
    v_add_f32 v16, v16, v14
    v_cvt_pk_bf16_f32 v16, v16, v16
    v_lshlrev_b32 v16, 16, v16
    v_lshlrev_b32 v13, 2, v13
    buffer_store_dword v16, v13, s[20:23], 0 offen
    ''')
    k.label('mod_end')
    k('s_mov_b64 exec, s[10:11]')
    k.label('mod_done')
    k('s_endpgm')
    return k, dict(grid=NWG, block=1024, lds=16384, vgpr=100)


def gen_ln(name, src_is_ws, src_off, dst_off, sc_idx, sh_idx, pads):
    k = K(name)
    NWG = S // 8
    k(f'''
    s_cmp_ge_u32 s2, {NWG}
    s_cbranch_scc1 {name}_done
    s_load_dwordx2 s[4:5], s[0:1], {KA['x']}
    s_load_dwordx2 s[8:9], s[0:1], {KA['ws']}
    s_waitcnt lgkmcnt(0)
    ''')
    if src_is_ws:
        srd(k, 12, 8, S * D * 2, src_off)
    else:
        srd(k, 12, 4, S * D * 2)
    srd(k, 16, 8, S * D * 2, dst_off)
    srd(k, 20, 8, 6 * D * 4, WS['MOD'])
    k('''
    v_and_b32 v1, 31, v0
    v_lshrrev_b32 v2, 5, v0
    s_lshl_b32 s3, s2, 3
    v_add_u32 v2, s3, v2
    v_mul_u32_u24 v3, 1152, v2
    v_lshl_add_u32 v3, v1, 2, v3
    v_lshlrev_b32 v4, 3, v1
    ''')
    k(f'v_add_u32 v89, {sc_idx*2304}, v4')
    k(f'v_add_u32 v90, {sh_idx*2304}, v4')
    for j in range(9):
        k(f'buffer_load_dword v{10+j}, v3, s[12:15], 0 offen offset:{128*j}')
    for j in range(9):
        k(f'buffer_load_dwordx2 v[{40+2*j}:{41+2*j}], v89, s[20:23], 0 offen offset:{256*j}')
        k(f'buffer_load_dwordx2 v[{60+2*j}:{61+2*j}], v90, s[20:23], 0 offen offset:{256*j}')
    if pads:
        srd(k, 24, 8, 3 * 4 * MB, WS['QP'])
        k('''
        v_lshlrev_b32 v5, 11, v1
        v_add_u32 v5, v5, v2
        v_lshlrev_b32 v5, 6, v5
        v_add_u32 v5, 36, v5
        v_mov_b32 v80, 0
        v_mov_b32 v81, 0
        v_mov_b32 v82, 0
        v_mov_b32 v83, 0
        buffer_store_dwordx4 v[80:83], v5, s[24:27], 0 offen
        buffer_store_dwordx3 v[80:82], v5, s[24:27], 0 offen offset:16
        v_add_u32 v6, 0x400000, v5
        v_mov_b32 v84, 0x3f803f80
        v_mov_b32 v85, 0
        v_mov_b32 v86, 0
        v_mov_b32 v87, 0
        buffer_store_dwordx4 v[84:87], v6, s[24:27], 0 offen
        buffer_store_dwordx3 v[80:82], v6, s[24:27], 0 offen offset:16
        v_lshlrev_b32 v7, 5, v1
        v_add_u32 v7, 18, v7
        v_lshlrev_b32 v7, 12, v7
        v_lshl_add_u32 v7, v2, 1, v7
        v_add_u32 v7, 0x800000, v7
        v_mov_b32 v88, 0x3f80
        buffer_store_short v88, v7, s[24:27], 0 offen
        ''')
    k('s_waitcnt vmcnt(%d)' % (18 + (5 if pads else 0)))
    for j in range(9):
        k(f'v_lshlrev_b32 v{20+2*j}, 16, v{10+j}')
        k(f'v_and_b32 v{21+2*j}, 0xffff0000, v{10+j}')
    k('v_add_f32 v8, v20, v21')
    for j in range(2, 18):
        k(f'v_add_f32 v8, v8, v{20+j}')

    def reduce32(reg):
        for m in (1, 2, 4, 8, 16):
            k(f'ds_swizzle_b32 v9, v{reg} offset:{(m << 10) | 0x1f}')
            k('s_waitcnt lgkmcnt(0)')
            k(f'v_add_f32 v{reg}, v{reg}, v9')
    reduce32(8)
    k('v_mul_f32 v8, 0x3ae38e39, v8')
    for j in range(18):
        k(f'v_sub_f32 v{20+j}, v{20+j}, v8')
    k('v_mul_f32 v8, v20, v20')
    for j in range(1, 18):
        k(f'v_fmac_f32 v8, v{20+j}, v{20+j}')
    reduce32(8)
    k('''
    v_mov_b32 v9, 0x3727c5ac
    v_fmac_f32 v9, 0x3ae38e39, v8
    v_rsq_f32 v9, v9
    s_waitcnt vmcnt(0)
    ''')
    for j in range(18):
        k(f'v_mul_f32 v{20+j}, v{20+j}, v9')
        k(f'v_fma_f32 v{20+j}, v{20+j}, v{40+j}, v{60+j}')
    for j in range(9):
        k(f'v_cvt_pk_bf16_f32 v{10+j}, v{20+2*j}, v{21+2*j}')
        k(f'buffer_store_dword v{10+j}, v3, s[16:19], 0 offen offset:{128*j}')
    k.label(f'{name}_done')
    k('s_endpgm')
    return k, dict(grid=NWG, block=256, lds=0, vgpr=96)


def gen_gemm(name, a_src, a_off, lda, Kdim, w_args, ldb, N, BM, BN, epi, NBUF=4, mfast=False, WM=2):
    k = K(name)
    NB = len(w_args)
    NW = WM * 2
    TM, TN = BM // (32 * WM), BN // 64
    nmt, nnt = S // BM, (N + BN - 1) // BN
    NWG = nmt * nnt
    assert NWG % 8 == 0
    NST = Kdim // 32
    BLD = BN * 2
    ABUF = BM * 64
    BBUF = 32 * BLD
    STAGE = ABUF + NB * BBUF
    LDS = NBUF * STAGE
    assert LDS <= 160 * 1024
    NA = BM // 16 // NW
    NBC = BN // 16 // NW
    CNT = NA + NB * NBC

    k(f"""
    s_cmp_ge_u32 s2, {NWG}
    s_cbranch_scc1 {name}_done
    s_load_dwordx2 s[8:9], s[0:1], {KA['ws']}
    """)
    if a_src != 'ws':
        k(f's_load_dwordx2 s[4:5], s[0:1], {KA[a_src]}')
    for i, w in enumerate(w_args):
        k(f's_load_dwordx2 s[{36+2*i}:{37+2*i}], s[0:1], {KA[w]}')
    if epi in ('wo',):
        k(f's_load_dwordx2 s[6:7], s[0:1], {KA["x"]}')
    if epi in ('down',):
        k(f's_load_dwordx2 s[6:7], s[0:1], {KA["out"]}')
    k('s_waitcnt lgkmcnt(0)')
    if a_src == 'ws':
        srd(k, 12, 8, S * lda, a_off)
    else:
        srd(k, 12, 4, S * lda)
    for i in range(NB):
        srd(k, 16 + 4 * i, 36 + 2 * i, Kdim * ldb)
    div = nmt if mfast else nnt
    k(f"""
    s_and_b32 s29, s2, 7
    s_mul_i32 s29, s29, {NWG//8}
    s_lshr_b32 s30, s2, 3
    s_add_u32 s29, s29, s30
    s_mov_b32 s30, {(1 << 32) // div + 1}
    s_mul_hi_u32 s31, s29, s30
    s_mul_i32 s32, s31, {div}
    s_sub_u32 s32, s29, s32
    """)
    if mfast:
        k(f's_mul_i32 s33, s32, {BM}')
        k(f's_mul_i32 s34, s31, {BN}')
    else:
        k(f's_mul_i32 s33, s31, {BM}')
        k(f's_mul_i32 s34, s32, {BN}')
    vA = 2
    vB = vA + NA
    vRA = vB + NBC
    vRB = vRA + 2
    vR2 = vRB + TN
    assert vR2 + 2 + TN <= 15
    vFA = 16
    vFB = vFA + 8 * TM
    vACC = vFB + 8 * TN * NB
    vACC = (vACC + 3) // 4 * 4
    nacc = 16 * TM * TN * NB
    vT = vACC + nacc
    nv = vT + 24
    assert nv <= 256, nv
    t = vT

    k('v_and_b32 v1, 63, v0')
    k('v_lshrrev_b32 v15, 6, v0')
    k('s_nop 1')
    k('v_readfirstlane_b32 s45, v15')
    k(f"""
    v_lshrrev_b32 v{t}, 2, v1
    v_and_b32 v{t+1}, 3, v1
    v_lshrrev_b32 v{t+2}, 4, v1
    v_xor_b32 v{t+1}, v{t+1}, v{t+2}
    v_lshl_add_u32 v{t+3}, v15, 4, v{t}
    v_add_u32 v{t+3}, s33, v{t+3}
    v_mov_b32 v{t+4}, {lda}
    """)
    for i in range(NA):
        k(f'v_add_u32 v{t+5}, {16*NW*i}, v{t+3}')
        k(f'v_mul_lo_u32 v{vA+i}, v{t+5}, v{t+4}')
        k(f'v_lshl_add_u32 v{vA+i}, v{t+1}, 4, v{vA+i}')
    if BN == 128:
        k(f"""
        v_lshrrev_b32 v{t}, 4, v1
        v_and_b32 v{t+1}, 15, v1
        v_lshlrev_b32 v{t+2}, 2, v{t}
        v_xor_b32 v{t+1}, v{t+1}, v{t+2}
        v_lshl_add_u32 v{t+3}, v15, 2, v{t}
        """)
        rstep = 4 * NW
    else:
        k(f"""
        v_lshrrev_b32 v{t}, 3, v1
        v_and_b32 v{t+1}, 7, v1
        v_lshrrev_b32 v{t+2}, 4, v1
        v_and_b32 v{t+2}, 1, v{t+2}
        v_lshlrev_b32 v{t+2}, 2, v{t+2}
        v_xor_b32 v{t+1}, v{t+1}, v{t+2}
        v_lshl_add_u32 v{t+3}, v15, 3, v{t}
        """)
        rstep = 8 * NW
    k(f'v_mov_b32 v{t+4}, {ldb}')
    k('s_lshl_b32 s35, s34, 1')
    for i in range(NBC):
        k(f'v_add_u32 v{t+5}, {rstep*i}, v{t+3}')
        k(f'v_mul_lo_u32 v{vB+i}, v{t+5}, v{t+4}')
        k(f'v_lshl_add_u32 v{vB+i}, v{t+1}, 4, v{vB+i}')
        k(f'v_add_u32 v{vB+i}, s35, v{vB+i}')
    k(f"""
    v_lshrrev_b32 v{t}, 1, v15
    v_and_b32 v{t+1}, 1, v15
    v_and_b32 v{t+2}, 31, v1
    v_lshrrev_b32 v{t+3}, 5, v1
    v_mul_u32_u24 v{t+4}, {BM//WM}, v{t}
    v_add_u32 v{t+4}, v{t+4}, v{t+2}
    v_lshlrev_b32 v{t+4}, 6, v{t+4}
    v_lshrrev_b32 v{t+5}, 2, v{t+2}
    v_and_b32 v{t+5}, 3, v{t+5}
    v_xor_b32 v{t+6}, v{t+3}, v{t+5}
    v_lshl_add_u32 v{vRA}, v{t+6}, 4, v{t+4}
    v_xor_b32 v{t+6}, 2, v{t+6}
    v_lshl_add_u32 v{vRA+1}, v{t+6}, 4, v{t+4}
    """)
    k(f"""
    v_and_b32 v{t+5}, 15, v1
    v_lshrrev_b32 v{t+6}, 2, v{t+5}
    v_lshl_add_u32 v{t+7}, v{t+3}, 3, v{t+6}
    v_mul_u32_u24 v{t+7}, {BLD}, v{t+7}
    v_and_b32 v{t+8}, 3, v{t+5}
    v_and_b32 v{t+9}, 1, v{t+8}
    v_lshl_add_u32 v{t+7}, v{t+9}, 3, v{t+7}
    v_add_u32 v{t+7}, {ABUF}, v{t+7}
    v_lshrrev_b32 v{t+8}, 1, v{t+8}
    v_lshrrev_b32 v{t+9}, 4, v1
    v_and_b32 v{t+9}, 1, v{t+9}
    v_lshl_add_u32 v{t+8}, v{t+9}, 1, v{t+8}
    v_lshl_add_u32 v{t+8}, v{t+1}, {2 + (TN - 1)}, v{t+8}
    """)
    if BN == 128:
        k(f'v_lshlrev_b32 v{t+9}, 2, v{t+6}')
    else:
        k(f'v_lshrrev_b32 v{t+9}, 1, v{t+6}')
        k(f'v_lshlrev_b32 v{t+9}, 2, v{t+9}')
    for j in range(TN):
        k(f'v_add_u32 v{t+10}, {4*j}, v{t+8}')
        k(f'v_xor_b32 v{t+10}, v{t+10}, v{t+9}')
        k(f'v_lshl_add_u32 v{vRB+j}, v{t+10}, 4, v{t+7}')
    for i in range(2 + TN):
        k(f'v_add_u32 v{vR2+i}, 0x10000, v{vRA+i}')
    for i in range(nacc):
        k(f'v_mov_b32 v{vACC+i}, 0')
    k('s_lshl_b32 s46, s45, 10')

    def dma(buf):
        for i in range(NA):
            k(f's_add_u32 m0, s46, {buf*STAGE + 1024*NW*i}')
            k('s_nop 0')
            k(f'buffer_load_dwordx4 v{vA+i}, s[12:15], s40 offen lds')
        for b in range(NB):
            for i in range(NBC):
                k(f's_add_u32 m0, s46, {buf*STAGE + ABUF + b*BBUF + 1024*NW*i}')
                k('s_nop 0')
                k(f'buffer_load_dwordx4 v{vB+i}, s[{16+4*b}:{19+4*b}], s41 offen lds')
        k('s_add_u32 s40, s40, 64')
        k(f's_add_u32 s41, s41, {32*ldb}')

    def reads(buf, ks):
        fa = vFA + 4 * TM * ks
        fb = vFB + 4 * TN * NB * ks
        for i in range(TM):
            o = buf * STAGE + i * 2048
            ra = vRA + ks
            if o >= 65536:
                ra = vR2 + ks; o -= 65536
            k(f'ds_read_b128 v[{fa+4*i}:{fa+4*i+3}], v{ra} offset:{o}')
        for b in range(NB):
            for j in range(TN):
                r = fb + 4 * (b * TN + j)
                o = buf * STAGE + b * BBUF + ks * 16 * BLD
                rb = vRB + j
                if o >= 65536:
                    rb = vR2 + 2 + j; o -= 65536
                assert o + 4 * BLD < 65536
                k(f'ds_read_b64_tr_b16 v[{r}:{r+1}], v{rb} offset:{o}')
                k(f'ds_read_b64_tr_b16 v[{r+2}:{r+3}], v{rb} offset:{o+4*BLD}')

    def mfmas(ks):
        fa = vFA + 4 * TM * ks
        fb = vFB + 4 * TN * NB * ks
        for b in range(NB):
            for i in range(TM):
                for j in range(TN):
                    a = vACC + 16 * ((b * TM + i) * TN + j)
                    r = fb + 4 * (b * TN + j)
                    k(f'v_mfma_f32_32x32x16_bf16 v[{a}:{a+15}], v[{r}:{r+3}], v[{fa+4*i}:{fa+4*i+3}], v[{a}:{a+15}]')

    NRD = TM + 2 * TN * NB
    k('s_mov_b32 s40, 0')
    k('s_mov_b32 s41, 0')
    for st in range(NBUF - 1):
        dma(st)
    assert NST % NBUF == 0
    k(f's_mov_b32 s42, {NST//NBUF}')
    k.label(f'{name}_loop')
    for u in range(NBUF):
        k(f's_waitcnt vmcnt({CNT*(NBUF-2)})')
        k('s_barrier')
        import os
        XP = os.environ.get('XP', '')
        if 'r' not in XP:
            reads(u, 0)
            reads(u, 1)
        if 'd' not in XP:
            dma((u + NBUF - 1) % NBUF)
        k(f's_waitcnt lgkmcnt({NRD})')
        if 'm' not in XP:
            mfmas(0)
        k('s_waitcnt lgkmcnt(0)')
        if 'm' not in XP:
            mfmas(1)
    k('s_sub_u32 s42, s42, 1')
    k('s_cmp_lg_u32 s42, 0')
    k(f's_cbranch_scc1 {name}_loop')
    k('s_waitcnt vmcnt(0)')
    k('s_nop 15')

    k(f"""
    v_lshrrev_b32 v{t}, 1, v15
    v_and_b32 v{t+1}, 1, v15
    v_and_b32 v{t+2}, 31, v1
    v_lshrrev_b32 v{t+3}, 5, v1
    v_mul_u32_u24 v{t+4}, {BM//WM}, v{t}
    v_add3_u32 v{t+4}, v{t+4}, v{t+2}, s33
    v_mul_u32_u24 v{t+5}, {BN//2}, v{t+1}
    v_lshl_add_u32 v{t+5}, v{t+3}, 2, v{t+5}
    v_add_u32 v{t+5}, s34, v{t+5}
    """)
    if epi in ('wo', 'down'):
        gidx = 2 if epi == 'wo' else 5
        srd(k, 20, 8, 6 * D * 4, WS['MOD'])
        if epi == 'wo':
            srd(k, 24, 6, S * D * 2)
            srd(k, 28, 8, S * D * 2, WS['X1'])
        else:
            srd(k, 24, 8, S * D * 2, WS['X1'])
            srd(k, 28, 6, S * D * 2)
        for i in range(TM):
            for j in range(TN):
                a = vACC + 16 * (i * TN + j)
                for q in range(4):
                    k(f'v_add_u32 v{t+6}, {j*32+8*q}, v{t+5}')
                    k(f'v_add_u32 v{t+7}, {32*i}, v{t+4}')
                    k(f'v_mul_u32_u24 v{t+8}, 1152, v{t+7}')
                    k(f'v_lshl_add_u32 v{t+8}, v{t+6}, 1, v{t+8}')
                    k(f'v_lshlrev_b32 v{t+9}, 2, v{t+6}')
                    k(f'v_add_u32 v{t+9}, {gidx*2304}, v{t+9}')
                    k(f'buffer_load_dwordx4 v[{t+12}:{t+15}], v{t+9}, s[20:23], 0 offen')
                    k(f'buffer_load_dwordx2 v[{t+10}:{t+11}], v{t+8}, s[24:27], 0 offen')
                    k('s_waitcnt vmcnt(0)')
                    k(f'v_lshlrev_b32 v{t+16}, 16, v{t+10}')
                    k(f'v_and_b32 v{t+17}, 0xffff0000, v{t+10}')
                    k(f'v_lshlrev_b32 v{t+18}, 16, v{t+11}')
                    k(f'v_and_b32 v{t+19}, 0xffff0000, v{t+11}')
                    for e in range(4):
                        k(f'v_fmac_f32 v{t+16+e}, v{a+4*q+e}, v{t+12+e}')
                    k(f'v_cvt_pk_bf16_f32 v{t+10}, v{t+16}, v{t+17}')
                    k(f'v_cvt_pk_bf16_f32 v{t+11}, v{t+18}, v{t+19}')
                    k(f'buffer_store_dwordx2 v[{t+10}:{t+11}], v{t+8}, s[28:31], 0 offen')
    elif epi == 'gu':
        srd(k, 28, 8, S * F * 2, WS['HH'])
        for i in range(TM):
            for j in range(TN):
                a = vACC + 16 * (i * TN + j)
                b = vACC + 16 * ((TM + i) * TN + j)
                for q in range(4):
                    k(f'v_add_u32 v{t+6}, {j*32+8*q}, v{t+5}')
                    k(f'v_add_u32 v{t+7}, {32*i}, v{t+4}')
                    k(f'v_mul_u32_u24 v{t+8}, {F*2}, v{t+7}')
                    k(f'v_lshl_add_u32 v{t+8}, v{t+6}, 1, v{t+8}')
                    for e in range(4):
                        k(f'v_mul_f32 v{t+16+e}, v{a+4*q+e}, v{b+4*q+e}')
                    k(f'v_cvt_pk_bf16_f32 v{t+10}, v{t+16}, v{t+17}')
                    k(f'v_cvt_pk_bf16_f32 v{t+11}, v{t+18}, v{t+19}')
                    k(f'buffer_store_dwordx2 v[{t+10}:{t+11}], v{t+8}, s[28:31], 0 offen')
    elif epi == 'qkv':
        srd(k, 28, 8, 3 * 4 * MB, WS['QP'])
        k('s_mov_b32 s43, 3641')
        k('s_mov_b32 s44, 0x3ead8bd9')
        for i in range(TM):
            k(f'v_add_u32 v{t+7}, {32*i}, v{t+4}')
            k(f'v_lshlrev_b32 v{t+20}, 6, v{t+7}')
            k(f'v_and_b32 v{t+21}, 4, v{t+7}')
            k(f'v_and_b32 v{t+22}, 8, v{t+7}')
            k(f'v_and_b32 v{t+23}, 0xfffffff3, v{t+7}')
            k(f'v_lshl_add_u32 v{t+23}, v{t+21}, 1, v{t+23}')
            k(f'v_lshrrev_b32 v{t+22}, 1, v{t+22}')
            k(f'v_add_u32 v{t+23}, v{t+23}, v{t+22}')
            k(f'v_lshlrev_b32 v{t+23}, 1, v{t+23}')
            for j in range(TN):
                a = vACC + 16 * (i * TN + j)
                for q in range(4):
                    for e in range(4):
                        k(f'v_add_u32 v{t+6}, {j*32+8*q+e}, v{t+5}')
                        k(f'v_mul_u32_u24 v{t+8}, s43, v{t+6}')
                        k(f'v_lshrrev_b32 v{t+8}, 16, v{t+8}')
                        k(f'v_mul_u32_u24 v{t+9}, 18, v{t+8}')
                        k(f'v_sub_u32 v{t+9}, v{t+6}, v{t+9}')
                        k(f'v_lshlrev_b32 v{t+10}, 17, v{t+8}')
                        k(f'v_lshl_add_u32 v{t+11}, v{t+9}, 12, v{t+10}')
                        k(f'v_lshl_add_u32 v{t+10}, v{t+9}, 1, v{t+10}')
                        k(f'v_add_u32 v{t+10}, v{t+10}, v{t+20}')
                        k(f'v_add_u32 v{t+11}, v{t+11}, v{t+23}')
                        k(f'v_cmp_gt_u32 vcc, 64, v{t+8}')
                        k(f'v_cndmask_b32 v{t+10}, v{t+11}, v{t+10}, vcc')
                        k(f'v_mul_f32 v{t+12}, s44, v{a+4*q+e}')
                        k(f'v_cmp_gt_u32 vcc, 32, v{t+8}')
                        k(f'v_cndmask_b32 v{t+12}, v{a+4*q+e}, v{t+12}, vcc')
                        k(f'v_cvt_pk_bf16_f32 v{t+12}, v{t+12}, v{t+12}')
                        k(f'v_cmp_gt_u32 vcc, {N}, v{t+6}')
                        k(f'v_cndmask_b32 v{t+10}, -1, v{t+10}, vcc')
                        k(f'buffer_store_short v{t+12}, v{t+10}, s[28:31], 0 offen')
    k.label(f'{name}_done')
    k('s_endpgm')
    return k, dict(grid=NWG, block=64 * NW, lds=LDS, vgpr=nv)


def gen_attn():
    name = 'attn_kernel'
    k = K(name)
    NWG = 256
    KT = 128
    NBUF = 4
    KBUF = KT * 64
    VBUF = 32 * KT * 2
    STAGE = KBUF + VBUF
    LDS = NBUF * STAGE
    NST = S // KT
    k(f"""
    s_cmp_ge_u32 s2, {NWG}
    s_cbranch_scc1 {name}_done
    s_load_dwordx2 s[8:9], s[0:1], {KA['ws']}
    s_waitcnt lgkmcnt(0)
    """)
    srd(k, 12, 8, 4 * MB, WS['QP'])
    srd(k, 16, 8, 4 * MB, WS['KP'])
    srd(k, 20, 8, 4 * MB, WS['VT'])
    srd(k, 24, 8, S * D * 2, WS['O'])
    k("""
    s_and_b32 s29, s2, 7
    s_lshl_b32 s29, s29, 5
    s_lshr_b32 s30, s2, 3
    s_add_u32 s29, s29, s30
    s_lshr_b32 s30, s29, 3
    s_and_b32 s31, s29, 7
    s_lshl_b32 s32, s30, 17
    s_lshl_b32 s33, s31, 14
    s_add_u32 s33, s33, s32
    v_and_b32 v1, 63, v0
    v_lshrrev_b32 v2, 6, v0
    v_and_b32 v3, 31, v1
    v_lshrrev_b32 v4, 5, v1
    v_readfirstlane_b32 s45, v2
    v_lshl_add_u32 v5, v2, 5, v3
    v_lshlrev_b32 v5, 6, v5
    v_lshl_add_u32 v5, v4, 4, v5
    v_add_u32 v5, s33, v5
    buffer_load_dwordx4 v[16:19], v5, s[12:15], 0 offen
    buffer_load_dwordx4 v[20:23], v5, s[12:15], 0 offen offset:32
    s_lshl_b32 s46, s45, 10
    """)
    k("""
    v_lshrrev_b32 v6, 2, v1
    v_lshl_add_u32 v6, v2, 4, v6
    v_lshlrev_b32 v6, 6, v6
    v_and_b32 v7, 3, v1
    v_lshrrev_b32 v8, 4, v1
    v_xor_b32 v7, v7, v8
    v_lshl_add_u32 v6, v7, 4, v6
    v_add_u32 v6, s32, v6
    v_lshl_add_u32 v9, v2, 2, v8
    v_and_b32 v10, 15, v1
    v_and_b32 v11, 15, v9
    v_xor_b32 v10, v10, v11
    v_lshlrev_b32 v11, 12, v9
    v_lshl_add_u32 v11, v10, 4, v11
    v_add_u32 v11, s32, v11
    """)
    k(f"""
    v_lshrrev_b32 v7, 2, v3
    v_and_b32 v7, 3, v7
    v_xor_b32 v7, v7, v4
    v_lshlrev_b32 v12, 6, v3
    v_lshl_add_u32 v13, v7, 4, v12
    v_xor_b32 v7, 2, v7
    v_lshl_add_u32 v14, v7, 4, v12
    v_mov_b32 v12, v13
    v_and_b32 v7, 15, v3
    v_mov_b32 v15, 0xff800000
    """)
    vVA = 88
    for blk in range(8):
        k(f'v_add_u32 v8, {2*blk}, v4')
        k(f'v_xor_b32 v8, v8, v7')
        k(f'v_lshlrev_b32 v{vVA+blk}, 8, v3')
        k(f'v_lshl_add_u32 v{vVA+blk}, v8, 4, v{vVA+blk}')
        k(f'v_add_u32 v{vVA+blk}, {KBUF}, v{vVA+blk}')
    vQ = 16
    vKF = 24
    vVF = 32
    vS = [40, 56]
    vP = 72
    vO = 96
    nv = 112

    def kdma(buf):
        k(f's_add_u32 m0, s46, {buf*STAGE}')
        k('s_nop 0')
        k('buffer_load_dwordx4 v6, s[16:19], s40 offen lds')
        k(f's_add_u32 s40, s40, {KT*64}')

    def vdma(buf):
        k(f's_add_u32 m0, s46, {buf*STAGE+KBUF}')
        k('s_nop 0')
        k('buffer_load_dwordx4 v11, s[20:23], s41 offen lds')
        k(f's_add_u32 s41, s41, {KT*2}')

    def kread(buf, kt):
        o = buf * STAGE + kt * 2048
        k(f'ds_read_b128 v[{vKF}:{vKF+3}], v12 offset:{o}')
        k(f'ds_read_b128 v[{vKF+4}:{vKF+7}], v14 offset:{o}')

    def qk(sv):
        k(f'v_mfma_f32_32x32x16_bf16 v[{sv}:{sv+15}], v[{vKF}:{vKF+3}], v[{vQ}:{vQ+3}], 0')
        k(f'v_mfma_f32_32x32x16_bf16 v[{sv}:{sv+15}], v[{vKF+4}:{vKF+7}], v[{vQ+4}:{vQ+7}], v[{sv}:{sv+15}]')

    k('s_mov_b32 s40, 0')
    k('s_waitcnt vmcnt(0)')
    for st in range(NBUF - 1):
        kdma(st)
    import os
    k(f's_mov_b32 s42, {1 if "p" in os.environ.get("XP", "") else NST//NBUF}')
    k.label('attn_p1')
    for u in range(NBUF):
        k(f's_waitcnt vmcnt({NBUF-2})')
        k('s_barrier')
        kread(u, 0)
        kdma((u + NBUF - 1) % NBUF)
        k('s_waitcnt lgkmcnt(0)')
        qk(vS[0])
        for kt in range(4):
            if kt < 3:
                kread(u, kt + 1)
                k('s_waitcnt lgkmcnt(0)')
                qk(vS[(kt + 1) & 1])
                k('s_nop 9')
            else:
                k('s_nop 15')
            sv = vS[kt & 1]
            for r in range(0, 16, 2):
                k(f'v_max3_f32 v15, v15, v{sv+r}, v{sv+r+1}')
    k('s_sub_u32 s42, s42, 1')
    k('s_cmp_lg_u32 s42, 0')
    k('s_cbranch_scc1 attn_p1')
    k("""
    s_waitcnt vmcnt(0)
    v_mov_b32 v48, v15
    s_nop 1
    v_permlane32_swap_b32 v48, v15
    v_max_f32 v15, v15, v48
    """)
    k(f"""
    v_cvt_pk_bf16_f32 v49, v15, v15
    v_lshlrev_b32 v50, 16, v49
    v_sub_f32 v50, v15, v50
    v_cvt_pk_bf16_f32 v50, v50, v50
    v_and_b32 v49, 0xffff, v49
    v_lshl_or_b32 v49, v50, 16, v49
    v_xor_b32 v49, 0x80008000, v49
    v_cmp_gt_u32 vcc, 32, v1
    v_cndmask_b32 v{vQ+5}, v{vQ+5}, v49, vcc
    s_barrier
    """)
    for r in range(16):
        k(f'v_mov_b32 v{vO+r}, 0')
    k('s_mov_b32 s40, 0')
    k('s_mov_b32 s41, 0')
    for st in range(NBUF - 1):
        kdma(st)
        vdma(st)
    k(f's_mov_b32 s42, {NST//NBUF}')
    k.label('attn_p2')
    for u in range(NBUF):
        k(f's_waitcnt vmcnt({2*(NBUF-2)})')
        k('s_barrier')
        kread(u, 0)
        kdma((u + NBUF - 1) % NBUF)
        vdma((u + NBUF - 1) % NBUF)
        k('s_waitcnt lgkmcnt(0)')
        qk(vS[0])
        for kt in range(4):
            if kt < 3:
                kread(u, kt + 1)
            k(f'ds_read_b128 v[{vVF}:{vVF+3}], v{vVA+2*kt} offset:{u*STAGE}')
            k(f'ds_read_b128 v[{vVF+4}:{vVF+7}], v{vVA+2*kt+1} offset:{u*STAGE}')
            sv = vS[kt & 1]
            sn = vS[(kt + 1) & 1]
            if kt == 0:
                k('s_nop 9')
            if kt < 3:
                k('s_waitcnt lgkmcnt(2)')
                k(f'v_mfma_f32_32x32x16_bf16 v[{sn}:{sn+15}], v[{vKF}:{vKF+3}], v[{vQ}:{vQ+3}], 0')
            else:
                k('s_nop 7')
            for r in range(8):
                k(f'v_exp_f32 v{sv+r}, v{sv+r}')
            if kt < 3:
                k(f'v_mfma_f32_32x32x16_bf16 v[{sn}:{sn+15}], v[{vKF+4}:{vKF+7}], v[{vQ+4}:{vQ+7}], v[{sn}:{sn+15}]')
            for r in range(8, 16):
                k(f'v_exp_f32 v{sv+r}, v{sv+r}')
            for r in range(8):
                k(f'v_cvt_pk_bf16_f32 v{vP+r}, v{sv+2*r}, v{sv+2*r+1}')
            k('s_waitcnt lgkmcnt(0)')
            k(f'v_mfma_f32_32x32x16_bf16 v[{vO}:{vO+15}], v[{vVF}:{vVF+3}], v[{vP}:{vP+3}], v[{vO}:{vO+15}]')
            k(f'v_mfma_f32_32x32x16_bf16 v[{vO}:{vO+15}], v[{vVF+4}:{vVF+7}], v[{vP+4}:{vP+7}], v[{vO}:{vO+15}]')
    k('s_sub_u32 s42, s42, 1')
    k('s_cmp_lg_u32 s42, 0')
    k('s_cbranch_scc1 attn_p2')
    k('s_waitcnt vmcnt(0)')
    k('s_nop 15')
    k(f"""
    v_mov_b32 v48, v{vO+10}
    v_mov_b32 v49, v{vO+10}
    s_nop 1
    v_permlane32_swap_b32 v48, v49
    v_rcp_f32 v48, v48
    s_mul_i32 s34, s30, 36
    s_lshl_b32 s35, s31, 8
    v_lshl_add_u32 v50, v2, 5, v3
    v_add_u32 v50, s35, v50
    v_mul_u32_u24 v50, 1152, v50
    v_lshl_add_u32 v50, v4, 3, v50
    v_add_u32 v50, s34, v50
    """)
    for r in range(12):
        k(f'v_mul_f32 v{vO+r}, v{vO+r}, v48')
    for i in range(3):
        k(f'v_cvt_pk_bf16_f32 v{vP+2*i}, v{vO+4*i}, v{vO+4*i+1}')
        k(f'v_cvt_pk_bf16_f32 v{vP+2*i+1}, v{vO+4*i+2}, v{vO+4*i+3}')
    k(f'buffer_store_dword v{vP}, v50, s[24:27], 0 offen')
    k(f'buffer_store_dword v{vP+1}, v50, s[24:27], 0 offen offset:4')
    k(f'buffer_store_dword v{vP+2}, v50, s[24:27], 0 offen offset:16')
    k(f'buffer_store_dword v{vP+3}, v50, s[24:27], 0 offen offset:20')
    k('v_cmp_gt_u32 vcc, 32, v1')
    k('s_and_saveexec_b64 s[36:37], vcc')
    k(f'buffer_store_dword v{vP+4}, v50, s[24:27], 0 offen offset:32')
    k('s_mov_b64 exec, s[36:37]')
    k.label(f'{name}_done')
    k('s_endpgm')
    return k, dict(grid=NWG, block=512, lds=LDS, vgpr=nv)


def gen_gemm16(name, a_off, lda, Kdim, w_args, ldb, N, BM, BN, NW, epi, NBUF=3, mfast=False, KS=1):
    k = K(name)
    NB = len(w_args)
    TMm, TNn = BM // 16 // NW, BN // 16
    nmt, nnt = S // BM, N // BN
    NT = nmt * nnt
    NWG = NT * KS
    assert NWG % 8 == 0
    KL = Kdim // KS
    NST = KL // 32
    assert NST % NBUF == 0
    BLD = BN * 2
    cpr = BN // 8
    ABUF = BM * 64
    nbi = 32 * cpr // 64
    remc = 32 * cpr - 64 * (nbi // NW * NW)
    NBF = nbi // NW
    assert remc % NW == 0
    rl = remc // NW
    BBUF = 32 * BLD
    STAGE = ABUF + NB * BBUF
    LDS = NBUF * STAGE
    assert LDS <= 160 * 1024
    NA = BM // 16 // NW
    NBD = NBF + (1 if rl else 0)
    CNT = NA + NB * NBD

    k(f"""
    s_cmp_ge_u32 s2, {NWG}
    s_cbranch_scc1 {name}_done
    s_load_dwordx2 s[8:9], s[0:1], {KA['ws']}
    """)
    for i, w in enumerate(w_args):
        k(f's_load_dwordx2 s[{36+2*i}:{37+2*i}], s[0:1], {KA[w]}')
    k('s_waitcnt lgkmcnt(0)')
    srd(k, 12, 8, S * lda, a_off)
    for i in range(NB):
        srd(k, 16 + 4 * i, 36 + 2 * i, Kdim * ldb)
    div = nmt if mfast else nnt
    k(f"""
    s_and_b32 s29, s2, 7
    s_mul_i32 s29, s29, {NWG//8}
    s_lshr_b32 s30, s2, 3
    s_add_u32 s29, s29, s30
    """)
    if KS > 1:
        assert KS & (KS - 1) == 0
        k(f's_and_b32 s47, s29, {KS-1}')
        k(f's_lshr_b32 s29, s29, {KS.bit_length()-1}')
    else:
        k('s_mov_b32 s47, 0')
    k(f"""
    s_mov_b32 s30, {(1 << 32) // div + 1}
    s_mul_hi_u32 s31, s29, s30
    s_mul_i32 s32, s31, {div}
    s_sub_u32 s32, s29, s32
    """)
    if mfast:
        k(f's_mul_i32 s33, s32, {BM}')
        k(f's_mul_i32 s34, s31, {BN}')
    else:
        k(f's_mul_i32 s33, s31, {BM}')
        k(f's_mul_i32 s34, s32, {BN}')
    vA = 2
    vB = vA + NA
    vRA = vB + NBD
    vRB = vRA + 1
    vR2 = vRB + 1
    assert vR2 + 2 <= 15
    vFA = 16
    vFB = vFA + 4 * TMm
    vACC = vFB + 4 * TNn * NB
    vACC = (vACC + 3) // 4 * 4
    nacc = 4 * TMm * TNn * NB
    vT = vFA
    assert vACC - vFA >= 24
    nv = vACC + nacc
    assert nv <= 256, nv
    t = vT
    k('v_and_b32 v1, 63, v0')
    k('v_lshrrev_b32 v15, 6, v0')
    k('s_nop 1')
    k('v_readfirstlane_b32 s45, v15')
    k(f"""
    v_lshrrev_b32 v{t}, 2, v1
    v_and_b32 v{t+1}, 3, v1
    v_lshrrev_b32 v{t+2}, 4, v1
    v_xor_b32 v{t+1}, v{t+1}, v{t+2}
    v_lshl_add_u32 v{t+3}, v15, 4, v{t}
    v_add_u32 v{t+3}, s33, v{t+3}
    v_mov_b32 v{t+4}, {lda}
    """)
    for i in range(NA):
        k(f'v_add_u32 v{t+5}, {16*NW*i}, v{t+3}')
        k(f'v_mul_lo_u32 v{vA+i}, v{t+5}, v{t+4}')
        k(f'v_lshl_add_u32 v{vA+i}, v{t+1}, 4, v{vA+i}')
    k(f'v_mov_b32 v{t+4}, {ldb}')
    k('s_lshl_b32 s35, s34, 1')
    k(f'v_mov_b32 v{t+6}, {(1<<20)//cpr + 1}')
    for i in range(NBD):
        if i < NBF:
            k(f'v_lshl_add_u32 v{t}, v15, 6, v1')
            k(f'v_add_u32 v{t}, {64*NW*i}, v{t}')
        else:
            k(f'v_mul_u32_u24 v{t}, {rl}, v15')
            k(f'v_add_u32 v{t}, v{t}, v1')
            k(f'v_add_u32 v{t}, {64*NW*NBF}, v{t}')
        k(f'v_mul_u32_u24 v{t+1}, v{t}, v{t+6}')
        k(f'v_lshrrev_b32 v{t+1}, 20, v{t+1}')
        k(f'v_mul_u32_u24 v{t+2}, {cpr}, v{t+1}')
        k(f'v_sub_u32 v{t+2}, v{t}, v{t+2}')
        k(f'v_mul_lo_u32 v{vB+i}, v{t+1}, v{t+4}')
        k(f'v_lshl_add_u32 v{vB+i}, v{t+2}, 4, v{vB+i}')
        k(f'v_add_u32 v{vB+i}, s35, v{vB+i}')
    k(f"""
    v_and_b32 v{t+2}, 15, v1
    v_lshrrev_b32 v{t+3}, 4, v1
    v_mul_u32_u24 v{t+4}, {16*TMm}, v15
    v_add_u32 v{t+4}, v{t+4}, v{t+2}
    v_lshlrev_b32 v{t+4}, 6, v{t+4}
    v_lshrrev_b32 v{t+5}, 2, v{t+2}
    v_xor_b32 v{t+6}, v{t+3}, v{t+5}
    v_lshl_add_u32 v{vRA}, v{t+6}, 4, v{t+4}
    v_lshl_add_u32 v{t+7}, v{t+3}, 3, v{t+5}
    v_mul_u32_u24 v{t+7}, {BLD}, v{t+7}
    v_and_b32 v{t+8}, 3, v{t+2}
    v_lshl_add_u32 v{vRB}, v{t+8}, 3, v{t+7}
    v_add_u32 v{vRB}, {ABUF}, v{vRB}
    v_add_u32 v{vR2}, 0x10000, v{vRA}
    v_add_u32 v{vR2+1}, 0x10000, v{vRB}
    """)
    for i in range(nacc):
        k(f'v_mov_b32 v{vACC+i}, 0')
    k('s_lshl_b32 s46, s45, 10')
    if rl:
        k(f's_mul_i32 s48, s45, {rl*16}')
        k(f's_mov_b64 s[50:51], {(1<<rl)-1}')

    def dma(buf):
        for i in range(NA):
            k(f's_add_u32 m0, s46, {buf*STAGE + 1024*NW*i}')
            k('s_nop 0')
            k(f'buffer_load_dwordx4 v{vA+i}, s[12:15], s40 offen lds')
        for b in range(NB):
            for i in range(NBD):
                if i < NBF:
                    k(f's_add_u32 m0, s46, {buf*STAGE + ABUF + b*BBUF + 1024*NW*i}')
                    k('s_nop 0')
                    k(f'buffer_load_dwordx4 v{vB+i}, s[{16+4*b}:{19+4*b}], s41 offen lds')
                else:
                    k(f's_add_u32 m0, s48, {buf*STAGE + ABUF + b*BBUF + 1024*NW*NBF}')
                    k('s_mov_b64 exec, s[50:51]')
                    k(f'buffer_load_dwordx4 v{vB+i}, s[{16+4*b}:{19+4*b}], s41 offen lds')
                    k('s_mov_b64 exec, -1')
        k('s_add_u32 s40, s40, 64')
        k(f's_add_u32 s41, s41, {32*ldb}')

    def rd(base, base2, o):
        return (base, o) if o < 65536 - 8 * BLD else (base2, o - 65536)

    k(f's_mul_i32 s40, s47, {KL*2}')
    k(f's_mul_i32 s41, s47, {KL*ldb}')
    for st in range(NBUF - 1):
        dma(st)
    k(f's_mov_b32 s42, {NST//NBUF}')
    k.label(f'{name}_loop')
    for u in range(NBUF):
        k(f's_waitcnt vmcnt({CNT*(NBUF-2)})')
        k('s_barrier')
        for i in range(TMm):
            o = u * STAGE + i * 1024
            ra = vRA
            if o >= 65536:
                ra = vR2; o -= 65536
            k(f'ds_read_b128 v[{vFA+4*i}:{vFA+4*i+3}], v{ra} offset:{o}')
        nrd = 0
        for b in range(NB):
            for j in range(TNn):
                r = vFB + 4 * (b * TNn + j)
                o = u * STAGE + b * BBUF + j * 32
                rb = vRB
                if o >= 65536:
                    rb = vR2 + 1; o -= 65536
                assert o + 4 * BLD < 65536
                k(f'ds_read_b64_tr_b16 v[{r}:{r+1}], v{rb} offset:{o}')
                k(f'ds_read_b64_tr_b16 v[{r+2}:{r+3}], v{rb} offset:{o+4*BLD}')
                nrd += 2
        dma((u + NBUF - 1) % NBUF)
        done = 0
        for b in range(NB):
            for j in range(TNn):
                done += 2
                k(f's_waitcnt lgkmcnt({min(15, nrd - done)})')
                r = vFB + 4 * (b * TNn + j)
                for i in range(TMm):
                    a = vACC + 4 * ((b * TMm + i) * TNn + j)
                    k(f'v_mfma_f32_16x16x32_bf16 v[{a}:{a+3}], v[{r}:{r+3}], v[{vFA+4*i}:{vFA+4*i+3}], v[{a}:{a+3}]')
    k('s_sub_u32 s42, s42, 1')
    k('s_cmp_lg_u32 s42, 0')
    k(f's_cbranch_scc1 {name}_loop')
    k('s_waitcnt vmcnt(0)')
    k('s_nop 15')
    k(f"""
    v_and_b32 v{t+2}, 15, v1
    v_lshrrev_b32 v{t+3}, 4, v1
    v_mul_u32_u24 v{t+4}, {16*TMm}, v15
    v_add3_u32 v{t+4}, v{t+4}, v{t+2}, s33
    v_lshl_add_u32 v{t+5}, v{t+3}, 2, s34
    """)
    if epi == 'gu':
        srd(k, 28, 8, S * F * 2, WS['HH'])
        for i in range(TMm):
            k(f'v_add_u32 v{t+7}, {16*i}, v{t+4}')
            k(f'v_mul_u32_u24 v{t+8}, {F*2}, v{t+7}')
            k(f'v_lshl_add_u32 v{t+8}, v{t+5}, 1, v{t+8}')
            for j in range(TNn):
                a = vACC + 4 * (i * TNn + j)
                b = vACC + 4 * ((TMm + i) * TNn + j)
                for e in range(4):
                    k(f'v_mul_f32 v{t+16+e}, v{a+e}, v{b+e}')
                k(f'v_cvt_pk_bf16_f32 v{t+10}, v{t+16}, v{t+17}')
                k(f'v_cvt_pk_bf16_f32 v{t+11}, v{t+18}, v{t+19}')
                k(f'buffer_store_dwordx2 v[{t+10}:{t+11}], v{t+8}, s[28:31], 0 offen offset:{32*j}')
                k('s_nop 0')
    elif epi == 'part':
        srd(k, 28, 8, KS * S * D * 4, WS['PART'])
        k(f's_mul_i32 s49, s47, {S*D*4}')
        for i in range(TMm):
            k(f'v_add_u32 v{t+7}, {16*i}, v{t+4}')
            k(f'v_mul_u32_u24 v{t+8}, {D*4}, v{t+7}')
            k(f'v_lshl_add_u32 v{t+8}, v{t+5}, 2, v{t+8}')
            for j in range(TNn):
                a = vACC + 4 * (i * TNn + j)
                k(f'buffer_store_dwordx4 v[{a}:{a+3}], v{t+8}, s[28:31], s49 offen offset:{64*j}')
    k.label(f'{name}_done')
    k('s_endpgm')
    return k, dict(grid=NWG, block=64 * NW, lds=LDS, vgpr=nv)


def gen_final(KS):
    name = 'final_kernel'
    k = K(name)
    NWG = S * D // 4 // 256
    k(f"""
    s_cmp_ge_u32 s2, {NWG}
    s_cbranch_scc1 {name}_done
    s_load_dwordx2 s[6:7], s[0:1], {KA['out']}
    s_load_dwordx2 s[8:9], s[0:1], {KA['ws']}
    s_waitcnt lgkmcnt(0)
    """)
    srd(k, 12, 8, KS * S * D * 4, WS['PART'])
    srd(k, 16, 8, S * D * 2, WS['X1'])
    srd(k, 20, 8, 6 * D * 4, WS['MOD'])
    srd(k, 24, 6, S * D * 2)
    k("""
    s_lshl_b32 s3, s2, 8
    v_add_u32 v1, s3, v0
    v_lshlrev_b32 v2, 4, v1
    v_lshlrev_b32 v3, 3, v1
    v_mov_b32 v4, 0x38e38e4
    v_mul_hi_u32 v4, v1, v4
    v_mul_u32_u24 v5, 144, v4
    v_sub_u32 v5, v1, v5
    v_lshlrev_b32 v5, 4, v5
    v_add_u32 v5, 11520, v5
    buffer_load_dwordx4 v[8:11], v5, s[20:23], 0 offen
    buffer_load_dwordx2 v[12:13], v3, s[16:19], 0 offen
    """)
    for ks in range(KS):
        k(f's_mov_b32 s30, {ks*S*D*4}')
        k(f'buffer_load_dwordx4 v[{16+4*ks}:{19+4*ks}], v2, s[12:15], s30 offen')
    k('s_waitcnt vmcnt(0)')
    for ks in range(1, KS):
        for e in range(4):
            k(f'v_add_f32 v{16+e}, v{16+e}, v{16+4*ks+e}')
    k("""
    v_lshlrev_b32 v40, 16, v12
    v_and_b32 v41, 0xffff0000, v12
    v_lshlrev_b32 v42, 16, v13
    v_and_b32 v43, 0xffff0000, v13
    """)
    for e in range(4):
        k(f'v_fmac_f32 v{40+e}, v{16+e}, v{8+e}')
    k("""
    v_cvt_pk_bf16_f32 v12, v40, v41
    v_cvt_pk_bf16_f32 v13, v42, v43
    buffer_store_dwordx2 v[12:13], v3, s[24:27], 0 offen
    """)
    k.label(f'{name}_done')
    k('s_endpgm')
    return k, dict(grid=NWG, block=256, lds=0, vgpr=48)


def main():
    kernels = []
    kernels.append(gen_mod())
    kernels.append(gen_ln('ln1_kernel', False, 0, WS['H1'], 1, 0, True))
    kernels.append(gen_gemm('qkv_kernel', 'ws', WS['H1'], 1152, 576, ['wqkv'], 3456, 1728, 128, 128, 'qkv', NBUF=3))
    kernels.append(gen_attn())
    kernels.append(gen_gemm('wo_kernel', 'ws', WS['O'], 1152, 576, ['wo'], 1152, 576, 64, 64, 'wo', NBUF=3))
    kernels.append(gen_ln('ln2_kernel', True, WS['X1'], WS['H2'], 4, 3, False))
    kernels.append(gen_gemm16('gu_kernel', WS['H2'], 1152, 576, ['wg', 'wu'], 9216, 4608, 256, 144, 8, 'gu', NBUF=3, mfast=True))
    kernels.append(gen_gemm('down_kernel', 'ws', WS['HH'], 9216, 4608, ['wd'], 1152, 576, 64, 64, 'down', NBUF=4))

    out = []
    hdr = open(f'cdna_kernels/{NAME}.s.ref').read().split('; Override launch')[0]
    out.append(hdr.rstrip('\n'))
    for k, m in kernels:
        out.append(f"; @launch kernel={k.name} grid=({m['grid']},1,1) block=({m['block']},1,1) lds={m['lds']}")
    out.append('.amdgcn_target "amdgcn-amd-amdhsa--gfx950"')
    out.append('.text')
    for k, m in kernels:
        out.append(k.text(m['vgpr']))
    out.append('.section .rodata,"a"')
    for k, m in kernels:
        out.append('.p2align 6')
        out.append(desc(k.name, m['vgpr']))
    open(f'cdna_kernels/{NAME}.s', 'w').write('\n'.join(out))
    json.dump(WS, open('wslayout.json', 'w'))


if __name__ == '__main__':
    main()
```
